```python
import torch

def _softmax(x, axis=-1):
    return torch.softmax(x, dim=axis)
def _gelu(x):
    return torch.nn.functional.gelu(x, approximate="tanh")
def _silu(x):
    return torch.nn.functional.silu(x)
def _sigmoid(x):
    return torch.sigmoid(x)
def _layernorm(x, axis=-1, eps=1e-5):
    m = x.mean(dim=axis, keepdim=True)
    v = x.var(dim=axis, keepdim=True, unbiased=False)
    return (x - m) / torch.sqrt(v + eps)
def _scatter_add(tgt, idx, src, axis=0):
    return tgt.clone().index_add_(axis, idx, src)
def _segment_sum(src, seg, n):
    out = torch.zeros((n,) + src.shape[1:], dtype=src.dtype)
    return out.index_add_(0, seg, src)
def _pad(x, pw):
    flat = tuple(v for pair in reversed(pw) for v in pair)
    return torch.nn.functional.pad(x, flat)

kernel_name = 'standalone__standard_2d_1d_3d_conv__vision'

def setup_inputs():

    _w = (lambda a: (lambda t: t.to(torch.bfloat16) if t.is_floating_point() else t)(torch.as_tensor(a)))
    H = W = 384
    C = 96
    K = 3
    return {
        "x": _w((lambda *s: torch.randn(*s, dtype=torch.bfloat16) * 0.05)(1, H, W, C)),
        "w": _w((lambda *s: torch.randn(*s, dtype=torch.bfloat16) * 0.05)(K, K, C, C)),
        "b": _w((lambda *s: torch.randn(*s, dtype=torch.bfloat16) * 0.05)(C)),
    }

def reference(x, w, b):
    B, H, W, Cin = x.shape
    K = w.shape[0]
    pl = (K - 1) // 2
    pr = K // 2
    xp = _pad(x, ((0, 0), (pl, pr), (pl, pr), (0, 0)))
    out = sum(
        torch.einsum('bhwc,cd->bhwd', xp[:, i:i+H, j:j+W, :], w[i, j])
        for i in range(K) for j in range(K)
    )
    return out + b[None, None, None, :]
```

```python
import sys

KN = "standalone__standard_2d_1d_3d_conv__vision_kernel"
XBYTES = 384 * 384 * 192
ROWB = 384 * 192
TAPB = 96 * 192
LROW = 9600
HUGE = 0x40000000

HEADER = """; Kernarg layout for this problem (48 bytes, ptrs only, base s[0:1]):
;   offset   0: d_in[0] x  shape=(1, 384, 384, 96) dtype=bfloat16 strides=(28311552, 73728, 192, 2) contiguous=True
;   offset   8: d_in[1] w  shape=(3, 3, 96, 96) dtype=bfloat16 strides=(55296, 18432, 192, 2) contiguous=True
;   offset  16: d_in[2] b  shape=(96,) dtype=bfloat16 strides=(2,) contiguous=True
;   offset  24: d_out     shape=(1, 384, 384, 96) dtype=bfloat16 (2 bytes/elem)
;   offset  32: d_debug   256 bytes
;   offset  40: d_ws      268435456 bytes workspace
; Generated by tools/gen.py (hand-written generator).
; @launch grid=(256,1,1) block=(256,1,1) lds=163840
.amdgcn_target "amdgcn-amd-amdhsa--gfx950"
.text
.globl %s
.p2align 8
.type %s,@function
%s:
""" % (KN, KN, KN)

FOOTER = """.section .rodata,"a"
.p2align 6
.amdhsa_kernel %s
  .amdhsa_next_free_vgpr 512
  .amdhsa_next_free_sgpr 102
  .amdhsa_accum_offset 256
  .amdhsa_group_segment_fixed_size 0
  .amdhsa_kernarg_size 48
  .amdhsa_float_denorm_mode_32 3
  .amdhsa_user_sgpr_count 2
  .amdhsa_user_sgpr_kernarg_segment_ptr 1
  .amdhsa_system_sgpr_workgroup_id_x 1
.end_amdhsa_kernel
""" % KN

S_X, S_W, S_B, S_O = 4, 6, 8, 10
SRD_X, SRD_W, SRD_B, SRD_O = 12, 16, 20, 24
S_WAVE, S_H, S_P = 28, 29, 30
S_XP = 31
S_XB = 32
S_W4800 = 33
S_W4608 = 34
S_OBASE = 35
S_T0, S_T1, S_T2, S_T3 = 36, 37, 38, 39
S_RB = 40
S_TC, S_TR = 41, 42
S_ST = 43
S_XS = 46
S_WS = 47
S_STAMP = 60
SRD_D = 52

V_B = [1, 2, 3]
V_X = [4, 5, 6, 7, 8]
V_ST = 9
V_T0, V_T1 = 10, 11
V_PK = 12
V_BIAS = 24
V_FR = 36
NFR = 6
V_WV = 60
V_ACC = 128
V_W = [236, 237, 238]
V_TR = [239, 240, 241, 242]
V_BT = 244
V_T2, V_T3, V_T4 = 250, 251, 252

PAIR_BASE = {0: 0, 1: 19200, 2: 38400, 3: 144640, 4: 57600, 5: 76800, 6: 96000}
TS_BASE = [57600 + TAPB * i for i in range(5)]
TAP_SLOT = {0: 0, 1: 1, 2: 2, 3: 3, 4: 4, 5: 0, 6: 1, 7: 2, 8: 3}


def wreg(dy, dx, kc, t):
    f = ((dy * 3 + dx) * 3 + kc) * 3 + t
    if f < 64:
        return "a", 4 * f
    return "v", V_WV + 4 * (f - 64)


def acc(o, ct, t):
    return V_ACC + (((o % 3) * 3 + ct) * 3 + t) * 4


class Op:
    def __init__(self, text, kind="p", tag=None, need_l=(), need_v=(), glue=False):
        self.text = text
        self.kind = kind
        self.tag = tag
        self.need_l = list(need_l)
        self.need_v = list(need_v)
        self.glue = glue


class Emitter:
    def __init__(self):
        self.lines = []
        self.l_seq = 0; self.l_idx = {}; self.l_done = 0
        self.v_seq = 0; self.v_idx = {}; self.v_done = 0

    def raw(self, s):
        self.lines.append("    " + s)

    def emit(self, op):
        wl = None; wv = None
        for t in op.need_l:
            k = self.l_idx[t]
            if k > self.l_done:
                n = min(self.l_seq - k, 14)
                wl = n if wl is None else min(wl, n)
        for t in op.need_v:
            k = self.v_idx[t]
            if k > self.v_done:
                n = min(self.v_seq - k, 62)
                wv = n if wv is None else min(wv, n)
        if wl is not None or wv is not None:
            s = "s_waitcnt"
            if wv is not None:
                s += " vmcnt(%d)" % wv
                self.v_done = max(self.v_done, self.v_seq - wv)
            if wl is not None:
                s += " lgkmcnt(%d)" % wl
                self.l_done = max(self.l_done, self.l_seq - wl)
            self.raw(s)
        if op.text:
            self.raw(op.text)
        if op.kind == "l":
            self.l_seq += 1
            if op.tag is not None:
                self.l_idx[op.tag] = self.l_seq
        elif op.kind == "v":
            self.v_seq += 1
            if op.tag is not None:
                self.v_idx[op.tag] = self.v_seq


def row_load_ops(n, cfg):
    ops = []
    pol = cfg.get("xpol", "")
    if n == 0:
        so = S_T3
    elif n <= 5:
        ops.append(Op("s_add_u32 s%d, s%d, %d" % (S_XS, S_XP, n * ROWB)))
        so = S_XS
    else:
        ops.append(Op("s_mul_i32 s%d, s%d, %d" % (S_XS, S_P, ROWB)))
        ops.append(Op("s_sub_u32 s%d, s%d, s%d" % (S_XS, S_XB, S_XS)))
        ops.append(Op("s_add_u32 s%d, s%d, %d" % (S_XS, S_XS, 13 * ROWB)))
        so = S_XS
    ops.append(Op("s_add_u32 m0, s%d, %d" % (S_W4800, PAIR_BASE[n])))
    ops.append(Op("s_nop 0", glue=True))
    for jj in range(4):
        ops.append(Op("buffer_load_dwordx4 v%d, s[%d:%d], s%d offen offset:%d%s lds" % (V_X[jj], SRD_X, SRD_X + 3, so, jj * 1024, pol),
                      kind="v", tag=None, glue=(jj == 0)))
    ops.append(Op("s_mov_b32 exec_lo, 0xfff00000"))
    ops.append(Op("buffer_load_dwordx4 v%d, s[%d:%d], s%d offen offset:3776%s lds" % (V_X[4], SRD_X, SRD_X + 3, so, pol),
                  kind="v", tag=("pair", n), glue=True))
    ops.append(Op("s_mov_b32 exec_lo, -1", glue=True))
    return ops


def tap_load_ops(tap):
    ops = []
    ops.append(Op("s_mov_b32 s%d, %d" % (S_WS, tap * TAPB)))
    ops.append(Op("s_add_u32 m0, s%d, %d" % (S_W4608, TS_BASE[TAP_SLOT[tap]])))
    ops.append(Op("s_nop 0", glue=True))
    pat = [0, 1, 2, 0]
    for jj in range(4):
        ops.append(Op("buffer_load_dwordx4 v%d, s[%d:%d], s%d offen offset:%d lds" % (V_W[pat[jj]], SRD_W, SRD_W + 3, S_WS, jj * 1024),
                      kind="v", glue=(jj == 0)))
    ops.append(Op("s_mov_b32 exec_lo, 0"))
    ops.append(Op("buffer_load_dwordx4 v%d, s[%d:%d], s%d offen offset:3584 lds" % (V_W[0], SRD_W, SRD_W + 3, S_WS),
                  kind="v", tag=("tap", tap), glue=True))
    ops.append(Op("s_mov_b32 exec_lo, -1", glue=True))
    return ops


def tr_ops(tap, kcs=(0, 1, 2)):
    dy, dx = divmod(tap, 3)
    slot = TAP_SLOT[tap]
    hi = 1 if slot >= 3 else 0
    rel = TS_BASE[slot] - (TS_BASE[3] if hi else TS_BASE[0])
    ops = []
    for kc in kcs:
        for t in range(3):
            c, r = wreg(dy, dx, kc, t)
            for e2 in range(2):
                imm = rel + kc * 6144 + e2 * 768 + (64 if t == 2 else 0)
                va = V_TR[(t & 1) + 2 * hi]
                ops.append(Op("ds_read_b64_tr_b16 %s[%d:%d], v%d offset:%d" % (c, r + 2 * e2, r + 2 * e2 + 1, va, imm),
                              kind="l", tag=("w", dy, dx, kc, t, e2)))
    return ops


def tap_tags(tap):
    dy, dx = divmod(tap, 3)
    return [("w", dy, dx, 2, 2, 1)]


def read_base(s):
    if s <= 5:
        return PAIR_BASE[s], PAIR_BASE[s] + LROW
    if s == 6:
        return PAIR_BASE[0] + LROW, PAIR_BASE[6] + LROW
    return PAIR_BASE[1] + LROW, PAIR_BASE[6]


def out_ops(o, ct, cfg):
    ops = []
    pk = V_PK + 6 * ((o * 3 + ct) % 2)
    ops.append(Op("s_add_u32 s%d, s%d, %d" % (S_ST, S_OBASE, o * ROWB + ct * 3072)))
    pol = cfg.get("opol", "")
    for t in range(3):
        a = acc(o, ct, t)
        ops.append(Op("v_cvt_pk_bf16_f32 v%d, v%d, v%d" % (pk + 2 * t, a, a + 1)))
        ops.append(Op("v_cvt_pk_bf16_f32 v%d, v%d, v%d" % (pk + 2 * t + 1, a + 2, a + 3)))
        ops.append(Op("buffer_store_dwordx2 v[%d:%d], v%d, s[%d:%d], s%d offen offset:%d%s" % (pk + 2 * t, pk + 2 * t + 1, V_ST, SRD_O, SRD_O + 3, S_ST, t * 32, pol),
                      kind="v"))
    return ops


def stamp(i):
    return [Op("s_memtime s[%d:%d]" % (S_STAMP + 2 * i, S_STAMP + 2 * i + 1))]


def generate(cfg):
    E = Emitter()
    R = E.raw
    dbg = cfg.get("stamps", False)
    if dbg:
        R("s_memtime s[%d:%d]" % (S_STAMP, S_STAMP + 1))
        R("s_memrealtime s[%d:%d]" % (S_STAMP + 36, S_STAMP + 37))
        R("s_load_dwordx2 s[56:57], s[0:1], 40")
    R("s_load_dwordx8 s[4:11], s[0:1], 0")
    R("s_cmp_ge_u32 s2, 256")
    R("s_cbranch_scc1 L_end")
    R("v_lshrrev_b32 v%d, 6, v0" % V_T0)
    R("v_and_b32 v0, 63, v0")
    R("v_readfirstlane_b32 s%d, v%d" % (S_WAVE, V_T0))
    R("s_and_b32 s%d, s2, 7" % S_TC)
    R("s_lshr_b32 s%d, s2, 3" % S_TR)
    R("s_and_b32 s%d, s%d, 1" % (S_H, S_WAVE))
    R("s_lshr_b32 s%d, s%d, 1" % (S_P, S_WAVE))
    R("s_mul_i32 s%d, s%d, 4800" % (S_W4800, S_WAVE))
    R("s_mul_i32 s%d, s%d, 4608" % (S_W4608, S_WAVE))
    R("s_mul_i32 s%d, s%d, 288" % (S_T0, S_WAVE))
    R("s_lshl_b32 s%d, s%d, 1" % (S_T1, S_H))
    R("v_add_u32 v%d, s%d, v0" % (V_T0, S_T0))
    R("v_xor_b32 v%d, s%d, v%d" % (V_T0, S_T1, V_T0))
    R("v_lshlrev_b32 v%d, 4, v%d" % (V_W[0], V_T0))
    R("v_xor_b32 v%d, 32, v%d" % (V_W[2], V_W[0]))
    R("v_and_b32 v%d, 32, v0" % V_T1)
    R("v_xor_b32 v%d, v%d, v%d" % (V_W[1], V_T1, V_W[0]))
    R("v_lshrrev_b32 v%d, 4, v0" % V_T2)
    R("s_mul_i32 s%d, s%d, 96" % (S_T2, S_H))
    R("v_lshlrev_b32 v%d, 3, v%d" % (V_T3, V_T2))
    R("v_add_u32 v%d, s%d, v%d" % (V_T3, S_T2, V_T3))
    R("s_mul_i32 s%d, s%d, %d" % (S_XB, S_TR, 12 * ROWB))
    R("s_mul_i32 s%d, s%d, %d" % (S_T0, S_TC, 48 * 192))
    R("s_add_u32 s%d, s%d, s%d" % (S_OBASE, S_XB, S_T0))
    R("s_sub_u32 s%d, s%d, %d" % (S_XB, S_OBASE, ROWB))
    R("s_mul_i32 s%d, s%d, %d" % (S_T0, S_P, 6 * ROWB))
    R("s_add_u32 s%d, s%d, s%d" % (S_XP, S_XB, S_T0))
    R("s_add_u32 s%d, s%d, s%d" % (S_OBASE, S_OBASE, S_T0))
    R("s_or_b32 s%d, s%d, s%d" % (S_T0, S_TR, S_P))
    R("s_cmp_eq_u32 s%d, 0" % S_T0)
    R("s_cselect_b32 s%d, %d, s%d" % (S_T3, HUGE, S_XP))
    R("s_mul_i32 s%d, s%d, 300" % (S_T0, S_H))
    R("s_movk_i32 s%d, 1366" % S_T1)
    R("v_add_u32 v%d, s%d, v0" % (V_T0, S_T0))
    for jj, o in enumerate((0, 64, 128, 192, 236)):
        R("v_add_u32 v%d, %d, v%d" % (V_T1, o, V_T0))
        R("v_mul_u32_u24 v%d, s%d, v%d" % (V_T1, S_T1, V_T1))
        R("v_lshrrev_b32 v%d, 15, v%d" % (V_T1, V_T1))
        R("v_and_b32 v%d, 2, v%d" % (V_T1, V_T1))
        R("v_xor_b32 v%d, v%d, v%d" % (V_T1, V_T1, V_T0))
        R("v_lshlrev_b32 v%d, 4, v%d" % (V_X[jj], V_T1))
    R("s_or_b32 s%d, s%d, s%d" % (S_T0, S_TC, S_H))
    R("s_cmp_eq_u32 s%d, 0" % S_T0)
    R("s_cselect_b32 s%d, 12, 0" % S_T0)
    R("v_mov_b32 v%d, %d" % (V_T1, HUGE))
    R("v_cmp_gt_u32 vcc, s%d, v0" % S_T0)
    R("s_lshl_b32 s%d, s%d, 3" % (S_T0, S_H))
    R("s_or_b32 s%d, s%d, s%d" % (S_T0, S_T0, S_TC))
    R("v_cndmask_b32 v%d, v%d, v%d, vcc" % (V_X[0], V_X[0], V_T1))
    R("s_cmp_eq_u32 s%d, 15" % S_T0)
    R("s_cselect_b32 s%d, 52, 64" % S_T0)
    R("v_cmp_le_u32 vcc, s%d, v0" % S_T0)
    R("s_waitcnt lgkmcnt(0)")
    R("s_sub_u32 s%d, s%d, 192" % (SRD_X, S_X))
    R("s_subb_u32 s%d, s%d, 0" % (SRD_X + 1, S_X + 1))
    R("v_cndmask_b32 v%d, v%d, v%d, vcc" % (V_X[4], V_X[4], V_T1))
    R("s_mov_b32 s%d, %d" % (SRD_X + 2, XBYTES + 192))
    R("s_mov_b32 s%d, 0x20000" % (SRD_X + 3))
    R("s_mov_b32 s%d, s%d" % (SRD_W, S_W))
    R("s_mov_b32 s%d, s%d" % (SRD_W + 1, S_W + 1))
    R("s_mov_b32 s%d, %d" % (SRD_W + 2, 9 * TAPB))
    R("s_mov_b32 s%d, 0x20000" % (SRD_W + 3))
    R("s_mov_b32 s%d, s%d" % (SRD_B, S_B))
    R("s_mov_b32 s%d, s%d" % (SRD_B + 1, S_B + 1))
    R("s_mov_b32 s%d, 192" % (SRD_B + 2))
    R("s_mov_b32 s%d, 0x20000" % (SRD_B + 3))
    for op in tap_load_ops(0) + row_load_ops(0, cfg):
        E.emit(op)
    for t in range(3):
        E.emit(Op("buffer_load_dwordx2 v[%d:%d], v%d, s[%d:%d], 0 offen offset:%d" % (V_BT + 2 * t, V_BT + 2 * t + 1, V_T3, SRD_B, SRD_B + 3, 32 * t),
                  kind="v", tag=("bias", t)))
    for op in tap_load_ops(1) + tap_load_ops(2) + tap_load_ops(3) + row_load_ops(1, cfg) + tap_load_ops(4) + row_load_ops(2, cfg):
        E.emit(op)
    if dbg:
        for op in stamp(1): E.emit(op)
    R("s_mov_b32 s%d, s%d" % (SRD_O, S_O))
    R("s_mov_b32 s%d, s%d" % (SRD_O + 1, S_O + 1))
    R("s_mov_b32 s%d, %d" % (SRD_O + 2, XBYTES))
    R("s_mov_b32 s%d, 0x20000" % (SRD_O + 3))
    R("v_and_b32 v%d, 15, v0" % V_T0)
    R("s_movk_i32 s%d, 192" % S_T1)
    R("v_mad_u32_u24 v%d, v%d, s%d, v%d" % (V_ST, V_T0, S_T1, V_T3))
    R("s_mul_i32 s%d, s%d, %d" % (S_RB, S_P, LROW))
    for dx in range(3):
        R("v_add_u32 v%d, %d, v%d" % (V_T1, dx, V_T0))
        R("v_lshrrev_b32 v%d, 1, v%d" % (V_T4, V_T1))
        R("v_and_b32 v%d, 2, v%d" % (V_T4, V_T4))
        R("v_xor_b32 v%d, v%d, v%d" % (V_T4, V_T4, V_T2))
        R("v_lshlrev_b32 v%d, 4, v%d" % (V_T4, V_T4))
        R("v_mad_u32_u24 v%d, v%d, s%d, v%d" % (V_T4, V_T1, S_T1, V_T4))
        R("v_add_u32 v%d, s%d, v%d" % (V_B[dx], S_RB, V_T4))
    R("v_bfe_u32 v%d, v0, 2, 2" % V_T0)
    R("v_lshl_add_u32 v%d, v%d, 3, v%d" % (V_T0, V_T2, V_T0))
    R("v_mul_u32_u24 v%d, s%d, v%d" % (V_T0, S_T1, V_T0))
    R("v_and_b32 v%d, 1, v0" % V_T1)
    R("v_lshl_add_u32 v%d, v%d, 3, v%d" % (V_T0, V_T1, V_T0))
    R("v_bfe_u32 v%d, v0, 1, 1" % V_T1)
    R("s_mul_i32 s%d, s%d, 6" % (S_T0, S_H))
    R("v_add_u32 v%d, s%d, v%d" % (V_T1, S_T0, V_T1))
    R("v_bfe_u32 v%d, v0, 4, 1" % V_T4)
    R("v_lshlrev_b32 v%d, 1, v%d" % (V_T4, V_T4))
    for par in range(2):
        R("v_add_u32 v%d, %d, v%d" % (V_T3, 2 * par, V_T1))
        R("v_xor_b32 v%d, v%d, v%d" % (V_T3, V_T3, V_T4))
        R("v_lshl_add_u32 v%d, v%d, 4, v%d" % (V_T3, V_T3, V_T0))
        R("v_add_u32 v%d, %d, v%d" % (V_TR[par], TS_BASE[0], V_T3))
        R("v_add_u32 v%d, %d, v%d" % (V_TR[par + 2], TS_BASE[3], V_T3))

    frags = []
    for s in range(8):
        if s in cfg.get("dxmajor", (0, 1, 2)):
            order = []
            for dx in range(3):
                if s == 0 and dx == 0:
                    order += [(ct, dx, kc) for kc in range(3) for ct in range(3)]
                else:
                    order += [(ct, dx, kc) for ct in range(3) for kc in range(3)]
        else:
            order = [(ct, dx, kc) for ct in range(3) for dx in range(3) for kc in range(3)]
        frags += [(s,) + o for o in order]
    mf = []
    first_mfma_of_frag = []
    for fi, (s, ct, dx, kc) in enumerate(frags):
        first_mfma_of_frag.append(len(mf))
        for dy in range(3):
            o = s - dy
            if 0 <= o <= 5:
                for t in range(3):
                    mf.append((fi, dy, t))
    NM = len(mf)
    assert NM == 1458
    last_of = {}
    first_of = {}
    seen = set()
    first_flags = []
    for i, (fi, dy, t) in enumerate(mf):
        s, ct, dx, kc = frags[fi]
        o = s - dy
        last_of[(o, ct)] = i
        first_of.setdefault((o, ct), i)
        key = (o, ct, t)
        first_flags.append(key not in seen)
        seen.add(key)

    side = [[] for _ in range(NM + 1)]

    def at(pos, ops):
        side[pos].extend(ops)

    def spread(pos, ops, stride=1):
        p = pos
        for op in ops:
            if op.glue:
                side[p - stride].append(op)
            else:
                side[p].append(op)
                p += stride
        return p

    PF = cfg.get("pf", 5)

    def frag_read(fi):
        s, ct, dx, kc = frags[fi]
        ops = []
        if fi > 0 and frags[fi - 1][0] != s:
            a0, b0 = read_base(s - 1)
            a1, b1 = read_base(s)
            d0 = (a1 - a0) & 0xFFFFFFFF
            d1 = ((b1 - b0) - (a1 - a0)) & 0xFFFFFFFF
            if d1 == 0:
                for d in range(3):
                    ops.append(Op("v_add_u32 v%d, 0x%x, v%d" % (V_B[d], d0, V_B[d])))
            else:
                ops.append(Op("s_mul_i32 s%d, s%d, 0x%x" % (S_RB, S_P, d1)))
                ops.append(Op("s_add_u32 s%d, s%d, 0x%x" % (S_RB, S_RB, d0)))
                for d in range(3):
                    ops.append(Op("v_add_u32 v%d, s%d, v%d" % (V_B[d], S_RB, V_B[d])))
        r = V_FR + 4 * (fi % NFR)
        ops.append(Op("ds_read_b128 v[%d:%d], v%d offset:%d" % (r, r + 3, V_B[dx], ct * 3072 + kc * 64), kind="l", tag=("f", fi)))
        return ops

    bp = cfg.get("bpos", dict(B1=3, B2=27, B3=54, B4=90, B5=140, B6=195, B7=250, B8=330, B9=440, B10=680))

    def barrier(vt, lt):
        return [Op("s_barrier", kind="b", need_v=vt, need_l=lt)]

    at(bp["B1"], barrier([("tap", 1)], tap_tags(0)))
    at(bp["B2"], barrier([("tap", 2)], tap_tags(1)))
    at(bp["B3"], barrier([("tap", 3), ("pair", 1)], tap_tags(2)))
    at(bp["B4"], barrier([("tap", 4)], tap_tags(3)))
    at(bp["B5"], barrier([("tap", 5)], tap_tags(4)))
    at(bp["B6"], barrier([("tap", 6), ("pair", 2)], tap_tags(5)))
    at(bp["B7"], barrier([("tap", 7)], tap_tags(6)))
    at(bp["B8"], barrier([("tap", 8)], tap_tags(7)))
    at(bp["B9"], barrier([("pair", 3)], tap_tags(8)))
    at(bp["B10"], barrier([("pair", 6)], []))
    if dbg:
        for i, k in enumerate(("B1", "B3", "B5", "B7", "B9", "B10")):
            at(bp[k], stamp(3 + i))
        at(972, stamp(9)); at(1215, stamp(10)); at(1377, stamp(11))

    for fi in range(len(frags)):
        if fi + PF < len(frags):
            ops = frag_read(fi + PF)
            at(first_mfma_of_frag[fi] + 1, ops)
    def first_read_pos(step):
        fi = next(i for i, f in enumerate(frags) if f[0] == step)
        return first_mfma_of_frag[fi - PF] + 1
    assert bp["B3"] <= first_read_pos(1), first_read_pos(1)
    assert bp["B6"] <= first_read_pos(2), first_read_pos(2)
    assert bp["B9"] <= first_read_pos(3), first_read_pos(3)
    assert bp["B10"] <= first_read_pos(4), first_read_pos(4)

    def first_use(tap):
        dy, dx = divmod(tap, 3)
        return next(i for i, (fi, d, t) in enumerate(mf) if d == dy and frags[fi][2] == dx)

    plan = [
        ("B1", 1, tap_load_ops(5)),
        ("B2", 2, tap_load_ops(6)),
        ("B3", 3, tap_load_ops(7)),
        ("B4", 4, tap_load_ops(8)),
        ("B5", 5, row_load_ops(3, cfg)),
        ("B6", 6, []),
        ("B7", 7, row_load_ops(4, cfg)),
        ("B8", 8, row_load_ops(5, cfg)),
        ("B9", None, row_load_ops(6, cfg)),
    ]
    for (b, tap, dma) in plan:
        p0 = bp[b]
        if tap is not None:
            e = spread(p0, tr_ops(tap))
            assert e <= first_use(tap) + 6, (b, e, first_use(tap))
        if dma:
            spread(p0 + 1, dma, 2)

    busy = 0
    tail_ops = []
    for o in range(6):
        for ct in range(3):
            p0 = max(last_of[(o, ct)] + 1 + 8, busy)
            ops = out_ops(o, ct, cfg)
            if p0 + 2 * len(ops) < NM:
                busy = spread(p0, ops, 2)
                if o + 3 <= 5:
                    assert busy <= first_of[(o + 3, ct)], (o, ct, busy, first_of[(o + 3, ct)])
            else:
                tail_ops.append((o, ct))

    E.emit(Op("s_barrier", kind="b", need_v=[("tap", 0), ("pair", 0)]))
    if dbg:
        for op in stamp(2): E.emit(op)
    t0 = tr_ops(0)
    pre = t0[0:6] + frag_read(0) + frag_read(1) + frag_read(2) + t0[6:12]
    for op in pre:
        E.emit(op)
    first = True
    for t in range(3):
        for q in range(2):
            src = V_BT + 2 * t + q
            E.emit(Op("v_lshlrev_b32 v%d, 16, v%d" % (V_BIAS + 4 * t + 2 * q, src), need_v=[("bias", 2)] if first else []))
            first = False
            E.emit(Op("v_and_b32 v%d, 0xffff0000, v%d" % (V_BIAS + 4 * t + 2 * q + 1, src)))
    for op in frag_read(3) + frag_read(4) + t0[12:18]:
        E.emit(op)
    assert PF == 5

    for i, (fi, dy, t) in enumerate(mf):
        for op in side[i]:
            E.emit(op)
        s, ct, dx, kc = frags[fi]
        o = s - dy
        d = acc(o, ct, t)
        c, r = wreg(dy, dx, kc, t)
        fr = V_FR + 4 * (fi % NFR)
        srcc = (V_BIAS + 4 * t) if first_flags[i] else d
        E.emit(Op("v_mfma_f32_16x16x32_bf16 v[%d:%d], %s[%d:%d], v[%d:%d], v[%d:%d]" % (d, d + 3, c, r, r + 3, fr, fr + 3, srcc, srcc + 3),
                  kind="m", need_l=[("f", fi), ("w", dy, dx, kc, t, 1)]))
    for op in side[NM]:
        E.emit(op)
    if dbg:
        for op in stamp(12): E.emit(op)
    R("s_nop 7")
    for (o, ct) in tail_ops:
        for op in out_ops(o, ct, cfg):
            E.emit(op)
    if dbg:
        for op in stamp(13): E.emit(op)
        R("s_waitcnt vmcnt(0)")
        for op in stamp(14): E.emit(op)
        R("s_memrealtime s[%d:%d]" % (S_STAMP + 38, S_STAMP + 39))
        R("s_waitcnt lgkmcnt(0)")
        R("s_mov_b32 s52, s56"); R("s_mov_b32 s53, s57"); R("s_mov_b32 s54, 0x100000"); R("s_mov_b32 s55, 0x20000")
        R("s_lshl_b32 s%d, s2, 2" % S_T0)
        R("s_add_u32 s%d, s%d, s%d" % (S_T0, S_T0, S_WAVE))
        R("s_mul_i32 s%d, s%d, 256" % (S_T0, S_T0))
        for j in range(40):
            R("v_mov_b32 v%d, s%d" % (64 + j, S_STAMP + j))
        R("v_mov_b32 v1, 0")
        R("s_mov_b64 exec, 1")
        for j in range(10):
            R("buffer_store_dwordx4 v[%d:%d], v1, s[52:55], s%d offen offset:%d" % (64 + 4 * j, 67 + 4 * j, S_T0, 16 * j))
    E.lines.append("L_end:")
    R("s_endpgm")
    return HEADER + "\n".join(E.lines) + "\n" + FOOTER


if __name__ == "__main__":
    import json
    out = sys.argv[1]
    cfg = json.loads(sys.argv[2]) if len(sys.argv) > 2 else {}
    open(out, "w").write(generate(cfg))
```

```python
import sys
KN = "standalone__standard_2d_1d_3d_conv__vision_kernel"

def header(grid, block, lds):
    return f"""; @launch grid=({grid},1,1) block=({block},1,1) lds={lds}
.amdgcn_target "amdgcn-amd-amdhsa--gfx950"
.text
.globl {KN}
.p2align 8
.type {KN},@function
{KN}:
"""
def footer(nv, acc):
    return f"""s_endpgm
.section .rodata,"a"
.p2align 6
.amdhsa_kernel {KN}
  .amdhsa_next_free_vgpr {nv}
  .amdhsa_next_free_sgpr 102
  .amdhsa_accum_offset {acc}
  .amdhsa_group_segment_fixed_size 0
  .amdhsa_kernarg_size 48
  .amdhsa_user_sgpr_count 2
  .amdhsa_user_sgpr_kernarg_segment_ptr 1
  .amdhsa_system_sgpr_workgroup_id_x 1
.end_amdhsa_kernel
"""

def gen(mode, nw=4, n_mfma=1458, loop=1, dma_every=0, st_every=0, ds_every=0, shape=16, stag=False, dma_step=1024, st_w=4, pol='', seg=0, st_start=0, wbl2=0):
    nv = 512 if nw == 4 else (168 if nw == 12 else 256)
    acc = 256 if nw == 4 else (84 if nw == 12 else 128)
    L = []
    A = L.append
    A(header(256, nw * 64, 160 * 1024))
    A("s_memtime s[40:41]")
    A("s_memrealtime s[42:43]")
    A("s_load_dwordx2 s[4:5], s[0:1], 0")
    A("s_load_dwordx2 s[6:7], s[0:1], 24")
    A("s_load_dwordx2 s[16:17], s[0:1], 40")
    A("s_waitcnt lgkmcnt(0)")
    A("s_cmp_ge_u32 s2, 256")
    A("s_cbranch_scc1 L_end")
    A("s_mov_b32 s8, s4"); A("s_mov_b32 s9, s5"); A("s_mov_b32 s10, 28311552"); A("s_mov_b32 s11, 0x20000")
    A("s_mov_b32 s12, s6"); A("s_mov_b32 s13, s7"); A("s_mov_b32 s14, 28311552"); A("s_mov_b32 s15, 0x20000")
    A("s_mov_b32 s20, s16"); A("s_mov_b32 s21, s17"); A("s_mov_b32 s22, 0x100000"); A("s_mov_b32 s23, 0x20000")
    A("v_lshrrev_b32 v1, 6, v0")
    A("s_nop 0")
    A("v_readfirstlane_b32 s24, v1")
    A("v_and_b32 v2, 63, v0")
    A("v_lshlrev_b32 v2, 4, v2")
    A("s_mul_i32 s25, s2, 110592")
    A(f"s_mul_i32 s26, s24, {110592 // nw // 1024 * 1024}")
    A("s_add_u32 s25, s25, s26")
    nregs_v = acc
    for r in range(16, nregs_v - 3, 4):
        A(f"buffer_load_dwordx4 v[{r}:{r+3}], v2, s[8:11], s25 offen offset:{(r % 16) * 64}")
    A("s_waitcnt vmcnt(0)")
    for r in range(0, nv - acc):
        A(f"v_accvgpr_write_b32 a{r}, v{16 + (r % (nregs_v - 20))}")
    A("s_mov_b32 s27, s25")
    A("s_mov_b32 s31, s25")
    A(f"s_mul_i32 s28, s24, {160 * 1024 // nw // 1024 * 1024}")
    A("s_mov_b32 m0, s28")
    A("v_mov_b32 v3, v2")
    if seg == 0:
        A("v_mov_b32 v12, v2")
    else:
        A("v_and_b32 v13, 63, v0")
        A("s_movk_i32 s33, 10923")
        A("v_mul_u32_u24 v14, s33, v13")
        A("v_lshrrev_b32 v14, 16, v14")
        A("v_mul_u32_u24 v15, 6, v14")
        A("v_sub_u32 v15, v13, v15")
        A("v_mul_u32_u24 v14, 192, v14")
        A("v_lshl_add_u32 v12, v15, 4, v14")
        A("s_and_b32 s33, s24, 1")
        A("s_mul_i32 s33, s33, 96")
        A("v_add_u32 v12, s33, v12")
        A("s_mul_i32 s31, s2, 110592")
        A("s_lshr_b32 s33, s24, 1")
        A("s_mul_i32 s33, s33, 55296")
        A("s_add_u32 s31, s31, s33")
    A("s_barrier")
    A("s_memtime s[44:45]")
    A("s_waitcnt lgkmcnt(0)")
    if loop > 1:
        A(f"s_mov_b32 s30, {loop}")
        A("L_loop:")
    per = n_mfma // loop
    nacc = 9
    wregs = [f"a[{r}:{r+3}]" for r in range(36 if shape == 16 else 48, nv - acc - 3, 4)] + [f"v[{r}:{r+3}]" for r in range(32, nregs_v - 3, 4)]
    cnt = 0
    for i in range(per):
        if shape == 16:
            d = (i % nacc) * 4
            A(f"v_mfma_f32_16x16x32_bf16 a[{d}:{d+3}], {wregs[i % len(wregs)]}, v[{16 + 4 * ((i // 9) % 4)}:{19 + 4 * ((i // 9) % 4)}], a[{d}:{d+3}]")
        else:
            d = (i % 3) * 16
            A(f"v_mfma_f32_32x32x16_bf16 a[{d}:{d+15}], {wregs[i % len(wregs)]}, v[{16 + 4 * ((i // 9) % 4)}:{19 + 4 * ((i // 9) % 4)}], a[{d}:{d+15}]")
        if ds_every and i % ds_every == ds_every - 1:
            f = 16 + 4 * (((i // 9) + 2) % 4)
            A(f"ds_read_b128 v[{f}:{f+3}], v3 offset:{(i * 64) % 32768}")
            A("s_waitcnt lgkmcnt(1)")
        if dma_every and i % dma_every == dma_every // 2:
            A(f"buffer_load_dwordx4 v2, s[8:11], s27 offen lds")
            A(f"s_add_u32 s27, s27, {dma_step}")
        if st_every and i % st_every == st_every // 3:
            if st_w == 4:
                A(f"buffer_store_dwordx4 v[8:11], v12, s[12:15], s31 offen{pol}")
                A(f"s_add_u32 s31, s31, {1024 if seg == 0 else 2048}")
            else:
                A(f"buffer_store_dwordx2 v[8:9], v2, s[12:15], s31 offen")
                A("s_add_u32 s31, s31, 1024")
    if wbl2:
        A("buffer_wbl2 sc1")
    if loop > 1:
        A("s_sub_u32 s30, s30, 1")
        A("s_cmp_lg_u32 s30, 0")
        A("s_cbranch_scc1 L_loop")
    A("s_memtime s[46:47]")
    A("s_waitcnt vmcnt(0) lgkmcnt(0)")
    A("s_memtime s[48:49]")
    A("s_memrealtime s[50:51]")
    A("s_waitcnt lgkmcnt(0)")
    A(f"s_mul_i32 s29, s2, {nw}")
    A("s_add_u32 s29, s29, s24")
    A("s_lshl_b32 s29, s29, 6")
    for j in range(12):
        A(f"v_mov_b32 v{4 + j}, s{40 + j}")
    A("v_mov_b32 v1, 0")
    A("s_mov_b64 exec, 1")
    A("buffer_store_dwordx4 v[4:7], v1, s[20:23], s29 offen")
    A("buffer_store_dwordx4 v[8:11], v1, s[20:23], s29 offen offset:16")
    A("buffer_store_dwordx4 v[12:15], v1, s[20:23], s29 offen offset:32")
    A("L_end:")
    A(footer(nv, acc))
    return "\n".join(L)


if __name__ == "__main__":
    base = dict(mode=0, loop=9, dma_every=54, ds_every=9)
    out = {
        "mb_f0.s": dict(base),
        "mb_f1.s": dict(base, st_every=54),
        "mb_f2.s": dict(base, st_every=54, pol=" sc1"),
        "mb_f3.s": dict(base, st_every=54, pol=" nt"),
        "mb_f4.s": dict(base, st_every=54, pol=" sc0 sc1"),
        "mb_f5.s": dict(base, st_every=54, pol=" sc0 sc1 nt"),
        "mb_f6.s": dict(base, st_every=54, seg=96),
        "mb_f7.s": dict(base, st_every=54, seg=96, pol=" sc1"),
        "mb_f8.s": dict(base, st_every=54, seg=96, pol=" nt"),
        "mb_f9.s": dict(base, st_every=54, wbl2=1),
    }
    for k, v in out.items():
        open(k, "w").write(gen(**v))
```

```python
import sys
from gen_mb import header, footer

def gen(pattern, shape=16, n_mfma=1458, loop=9, zero=False, ds_every=0, accv=False):
    nw = 4; nv = 512; acc = 256
    L = []; A = L.append
    A(header(256, nw * 64, 160 * 1024))
    A("s_memtime s[40:41]")
    A("s_memrealtime s[42:43]")
    A("s_load_dwordx2 s[4:5], s[0:1], 0")
    A("s_load_dwordx2 s[16:17], s[0:1], 40")
    A("s_waitcnt lgkmcnt(0)")
    A("s_cmp_ge_u32 s2, 256")
    A("s_cbranch_scc1 L_end")
    A("s_mov_b32 s8, s4"); A("s_mov_b32 s9, s5"); A(f"s_mov_b32 s10, {0 if zero else 28311552}"); A("s_mov_b32 s11, 0x20000")
    A("s_mov_b32 s20, s16"); A("s_mov_b32 s21, s17"); A("s_mov_b32 s22, 0x100000"); A("s_mov_b32 s23, 0x20000")
    A("v_lshrrev_b32 v1, 6, v0")
    A("s_nop 0")
    A("v_readfirstlane_b32 s24, v1")
    A("v_and_b32 v2, 63, v0")
    A("v_lshlrev_b32 v2, 4, v2")
    A("s_mul_i32 s25, s2, 110592")
    A(f"s_mul_i32 s26, s24, 1024")
    A("s_add_u32 s25, s25, s26")
    for r in range(16, 256, 4):
        A(f"buffer_load_dwordx4 v[{r}:{r+3}], v2, s[8:11], s25 offen")
        A("s_add_u32 s25, s25, 512")
    for r in range(0, 256, 4):
        A(f"buffer_load_dwordx4 a[{r}:{r+3}], v2, s[8:11], s25 offen")
        A("s_add_u32 s25, s25, 512")
        if r % 64 == 0: A("s_waitcnt vmcnt(30)")
    A("s_waitcnt vmcnt(0)")
    A("v_mov_b32 v3, v2")
    A(f"s_mul_i32 s28, s24, 32768")
    A("v_add_u32 v3, s28, v3")
    for i in range(32):
        A(f"ds_write_b128 v3, v[{16+4*i}:{19+4*i}] offset:{i*1024}")
    accs = [f"v[{r}:{r+3}]" for r in range(148, 256, 4)]
    for r in range(148, 256):
        A(f"v_accvgpr_write_b32 a{r}, 0" if accv else f"v_mov_b32 v{r}, 0")
    A("s_waitcnt lgkmcnt(0)")
    A("s_barrier")
    A("s_memtime s[44:45]")
    A("s_memrealtime s[46:47]")
    A("s_waitcnt lgkmcnt(0)")
    A(f"s_mov_b32 s30, {loop}")
    A("L_loop:")
    per = n_mfma // loop
    wregs = [f"a[{r}:{r+3}]" for r in range(0, 256, 4)] + [f"v[{r}:{r+3}]" for r in range(80, 148, 4)]
    bregs = [f"v[{r}:{r+3}]" for r in range(16, 80, 4)]
    for i in range(per):
        if pattern == "b9":
            a = wregs[i % 81]; b = bregs[(i // 9) % 16]; d = i % 9
        elif pattern == "a3":
            a = wregs[(i // 3) % 81]; b = bregs[(i % 3) + 3 * ((i // 27) % 5)]; d = i % 27
        elif pattern == "vary":
            a = wregs[i % 81]; b = bregs[i % 16]; d = i % 27
        elif pattern == "same":
            a = wregs[0]; b = bregs[0]; d = i % 9
        elif pattern == "swap_b9":
            b = wregs[i % 81]; a = bregs[(i // 9) % 16]; d = i % 9
        elif pattern == "chain":
            a = wregs[i % 81]; b = bregs[i % 9]; d = (i // 9) % 27
        elif pattern == "a9":
            a = wregs[(i // 9) % 81]; b = bregs[(i % 9)]; d = i % 9
        elif pattern == "chain3":
            a = wregs[i % 81]; b = bregs[(i // 3) % 16]; d = (i % 3) + 3 * ((i // 81) % 9)
        elif pattern == "chain27":
            a = wregs[i % 81]; b = bregs[i % 9]; d = (i // 27) % 27
        if accv:
            wl = [f"a[{r}:{r+3}]" for r in range(0, 148, 4)] + [f"v[{r}:{r+3}]" for r in range(80, 256, 4)]
            a = wl[wregs.index(a)]
            dd = accs[d].replace("v", "a")
            A(f"v_mfma_f32_16x16x32_bf16 {dd}, {a}, {b}, {dd}")
        elif shape == 16:
            A(f"v_mfma_f32_16x16x32_bf16 {accs[d]}, {a}, {b}, {accs[d]}")
        else:
            dd = 148 + 16 * (d % 6)
            dd = 160 + 16 * (d % 6)
            A(f"v_mfma_f32_32x32x16_bf16 v[{dd}:{dd+15}], {a}, {b}, v[{dd}:{dd+15}]")
        if ds_every and i % ds_every == ds_every - 1:
            f = bregs[((i // 9) + 8) % 16]
            A(f"ds_read_b128 {f}, v3 offset:{(i * 1024) % 32768}")
            A("s_waitcnt lgkmcnt(1)")
    A("s_sub_u32 s30, s30, 1")
    A("s_cmp_lg_u32 s30, 0")
    A("s_cbranch_scc1 L_loop")
    A("s_memtime s[48:49]")
    A("s_memrealtime s[50:51]")
    A("s_waitcnt lgkmcnt(0)")
    A(f"s_mul_i32 s29, s2, {nw}")
    A("s_add_u32 s29, s29, s24")
    A("s_lshl_b32 s29, s29, 6")
    for j in range(12):
        A(f"v_mov_b32 v{4 + j}, s{40 + j}")
    A("v_mov_b32 v1, 0")
    A("s_mov_b64 exec, 1")
    A("buffer_store_dwordx4 v[4:7], v1, s[20:23], s29 offen")
    A("buffer_store_dwordx4 v[8:11], v1, s[20:23], s29 offen offset:16")
    A("buffer_store_dwordx4 v[12:15], v1, s[20:23], s29 offen offset:32")
    A("L_end:")
    A(footer(nv, acc))
    return "\n".join(L)


if __name__ == "__main__":
    out = {
        "q_b9.s": dict(pattern="b9"),
        "q_a3.s": dict(pattern="a3"),
        "q_vary.s": dict(pattern="vary"),
        "q_same.s": dict(pattern="same"),
        "q_swap.s": dict(pattern="swap_b9"),
        "q_chain.s": dict(pattern="chain"),
        "q_chain27.s": dict(pattern="chain27"),
        "q_chain3.s": dict(pattern="chain3"),
        "q_a9.s": dict(pattern="a9"),
        "q_b9acc.s": dict(pattern="b9", accv=True),
        "q_b9_32.s": dict(pattern="b9", shape=32, n_mfma=729),
        "q_b9ds.s": dict(pattern="b9", ds_every=9),
    }
    for k, v in out.items():
        open(k, "w").write(gen(**v))
```

```python
import sys

KN = "standalone__standard_2d_1d_3d_conv__vision_kernel"
XBYTES = 384 * 384 * 192
ROWB = 384 * 192
TAPB = 96 * 192
LROW = 9600
HUGE = 0x40000000

HEADER = """; Kernarg layout for this problem (48 bytes, ptrs only, base s[0:1]):
;   offset   0: d_in[0] x  shape=(1, 384, 384, 96) dtype=bfloat16 strides=(28311552, 73728, 192, 2) contiguous=True
;   offset   8: d_in[1] w  shape=(3, 3, 96, 96) dtype=bfloat16 strides=(55296, 18432, 192, 2) contiguous=True
;   offset  16: d_in[2] b  shape=(96,) dtype=bfloat16 strides=(2,) contiguous=True
;   offset  24: d_out     shape=(1, 384, 384, 96) dtype=bfloat16 (2 bytes/elem)
;   offset  32: d_debug   256 bytes
;   offset  40: d_ws      268435456 bytes workspace
; Generated by tools/gen3.py (own generator script).
; @launch grid=(256,1,1) block=(256,1,1) lds=163840
.amdgcn_target "amdgcn-amd-amdhsa--gfx950"
.text
.globl %s
.p2align 8
.type %s,@function
%s:
""" % (KN, KN, KN)

FOOTER = """.section .rodata,"a"
.p2align 6
.amdhsa_kernel %s
  .amdhsa_next_free_vgpr 512
  .amdhsa_next_free_sgpr 102
  .amdhsa_accum_offset 256
  .amdhsa_group_segment_fixed_size 0
  .amdhsa_kernarg_size 48
  .amdhsa_float_denorm_mode_32 3
  .amdhsa_user_sgpr_count 2
  .amdhsa_user_sgpr_kernarg_segment_ptr 1
  .amdhsa_system_sgpr_workgroup_id_x 1
.end_amdhsa_kernel
""" % KN

S_X, S_W, S_B, S_O = 4, 6, 8, 10
SRD_X, SRD_W, SRD_B, SRD_O = 12, 16, 20, 24
S_WAVE, S_H, S_P = 28, 29, 30
S_XP, S_XB = 31, 32
S_W4800, S_W4608 = 33, 34
S_OBASE = 35
S_T0, S_T1, S_T2 = 36, 37, 38
S_X0 = 39
S_RB = 40
S_TC, S_TR = 41, 42
S_ST = 43
S_XS, S_WS = 46, 47
S_PC = 48
S_OA, S_OB = 20, 21
S_OH = 22
S_STAMP = 60

V_B = [1, 2, 3]
V_X = [4, 5, 6, 7, 8]
V_W = [9, 10, 11]
V_TR = [12, 13]
V_SW = [14, 15]
V_SR = [16, 17, 18]
V_ST = 19
V_SH = [9, 10]
V_BIAS = 20
V_FR = 32
V_WV = 80
V_ACC = 148
V_T0, V_T1, V_T2, V_T3, V_T4, V_T5, V_T6 = 240, 241, 242, 243, 244, 245, 246
V_PF = 76

PAIR_BASE = {2: 0, 1: 19200, 0: 38400, 3: 76800, 4: 96000, 5: 115200, 6: 134400}
TS = [57600 + TAPB * i for i in range(5)]
TAP_BASE = [19200, TS[0], TS[1], TS[2], TS[3], TS[4], 19200, TS[0], TS[1]]
TAP_PREV = {6: 0, 7: 1, 8: 2}
TR_REG = [19200, 19200, TS[1], TS[1], TS[1], TS[4], 19200, 19200, TS[1]]
STG_BASE = [0, 57600]
ACC_SET = {0: 0, 1: 1, 2: 2, 3: 1, 4: 2, 5: 1}


def ta_of(dy, dx):
    return dx * 3 + dy


def wreg(dy, dx, kc, t):
    f = (ta_of(dy, dx) * 3 + kc) * 3 + t
    if f < 64:
        return "a", 4 * f
    return "v", V_WV + 4 * (f - 64)


def acc(o, ct, t):
    return V_ACC + ((ACC_SET[o] * 3 + ct) * 3 + t) * 4


V_RB = acc(0, 0, 0)


class Op:
    def __init__(self, text, kind="p", tag=None, need_l=(), need_v=(), sync=False, cost=4, after=0):
        self.text = text
        self.kind = kind
        self.tag = tag
        self.need_l = list(need_l)
        self.need_v = list(need_v)
        self.sync = sync
        self.cost = cost
        self.after = after


class Emitter:
    def __init__(self):
        self.lines = []
        self.l_seq = 0; self.l_idx = {}; self.l_done = 0
        self.v_seq = 0; self.v_idx = {}; self.v_done = 0
        self.last_sync = 0
        self.filt = []

    def raw(self, s):
        self.lines.append("    " + s)

    def emit(self, op):
        wl = None; wv = None
        ks = [self.l_idx[t] for t in op.need_l]
        if op.kind == "b":
            ks.append(self.last_sync)
        for k in ks:
            if k > self.l_done:
                n = min(self.l_seq - k, 14)
                wl = n if wl is None else min(wl, n)
        for t in op.need_v:
            k = self.v_idx[t]
            if k > self.v_done:
                n = min(self.v_seq - k, 62)
                wv = n if wv is None else min(wv, n)
        if wl is not None or wv is not None:
            s = "s_waitcnt"
            if wv is not None:
                s += " vmcnt(%d)" % wv
                self.v_done = max(self.v_done, self.v_seq - wv)
            if wl is not None:
                s += " lgkmcnt(%d)" % wl
                self.l_done = max(self.l_done, self.l_seq - wl)
            self.raw(s)
        if op.text:
            if any(op.text.startswith(x) for x in self.filt):
                if op.kind == "l" and op.tag is not None: self.l_idx[op.tag] = 0
                if op.kind == "v" and op.tag is not None: self.v_idx[op.tag] = 0
                return
            for ln in op.text.split("\n"):
                self.raw(ln)
        if op.kind == "l":
            self.l_seq += 1
            if op.tag is not None:
                self.l_idx[op.tag] = self.l_seq
            if op.sync:
                self.last_sync = self.l_seq
        elif op.kind == "v":
            self.v_seq += 1
            if op.tag is not None:
                self.v_idx[op.tag] = self.v_seq


def row_load_ops(n, cfg):
    ops = []
    pol = cfg.get("xpol", " nt")
    if n == 0:
        so = S_X0
    elif n <= 5:
        ops.append(Op("s_add_u32 s%d, s%d, %d" % (S_XS, S_XP, n * ROWB)))
        so = S_XS
    else:
        ops.append(Op("s_mul_i32 s%d, s%d, %d" % (S_XS, S_P, ROWB)))
        ops.append(Op("s_sub_u32 s%d, s%d, s%d" % (S_XS, S_XB, S_XS)))
        ops.append(Op("s_add_u32 s%d, s%d, %d" % (S_XS, S_XS, 13 * ROWB)))
        so = S_XS
    ops.append(Op("s_add_u32 m0, s%d, %d" % (S_W4800, PAIR_BASE[n])))
    for jj, off in enumerate((0, 1024, 2048, 3072, 3776)):
        ops.append(Op("buffer_load_dwordx4 v%d, s[%d:%d], s%d offen offset:%d%s lds" % (V_X[jj], SRD_X, SRD_X + 3, so, off, pol),
                      kind="v", tag=("pair", n) if jj == 4 else ("pairp", n, jj), cost=12))
    return ops


def tap_load_ops(ta, cfg):
    dx, dy = divmod(ta, 3)
    pol = cfg.get("wpol", "")
    ops = []
    ops.append(Op("s_mov_b32 s%d, %d" % (S_WS, (dy * 3 + dx) * TAPB)))
    ops.append(Op("s_add_u32 m0, s%d, %d" % (S_W4608, TAP_BASE[ta])))
    for jj, (pt, off) in enumerate(((0, 0), (1, 1024), (2, 2048), (0, 3072), (0, 3584))):
        ops.append(Op("buffer_load_dwordx4 v%d, s[%d:%d], s%d offen offset:%d%s lds" % (V_W[pt], SRD_W, SRD_W + 3, S_WS, off, pol),
                      kind="v", tag=("tap", ta) if jj == 4 else None, cost=12))
    return ops


def seq_with_m0_nop(ops):
    out = []
    for op in ops:
        out.append(op)
        if op.text.startswith("s_add_u32 m0"):
            out.append(Op("s_nop 0"))
    return out


def piece_ops(tok, cfg):
    name, j = tok.split(".")
    j = int(j)
    ops = tap_load_ops(int(name[1]), cfg) if name[0] == "t" else row_load_ops(int(name[1]), cfg)
    pre = [op for op in ops if op.kind != "v"]
    if j > 0:
        pre = [op for op in pre if op.text.startswith("s_add_u32 m0")]
    vm = [op for op in ops if op.kind == "v"]
    return seq_with_m0_nop(pre + [vm[j]])


def tr_ops(ta):
    dx, dy = divmod(ta, 3)
    rel = TAP_BASE[ta] - TR_REG[ta]
    assert 0 <= rel <= 65535 - 13200
    ops = []
    if ta > 0 and TR_REG[ta - 1] != TR_REG[ta]:
        d = (TR_REG[ta] - TR_REG[ta - 1]) & 0xFFFFFFFF
        for par in range(2):
            ops.append(Op("v_add_u32 v%d, 0x%x, v%d" % (V_TR[par], d, V_TR[par])))
    for t in range(3):
        for kc in range(3):
            c, r = wreg(dy, dx, kc, t)
            for e2 in range(2):
                imm = rel + kc * 6144 + e2 * 768 + (64 if t == 2 else 0)
                ops.append(Op("ds_read_b64_tr_b16 %s[%d:%d], v%d offset:%d" % (c, r + 2 * e2, r + 2 * e2 + 1, V_TR[t & 1], imm),
                              kind="l", tag=("w", dy, dx, kc, t, e2), sync=True, cost=8))
    return ops


def read_base(r):
    if r <= 5:
        return PAIR_BASE[r], PAIR_BASE[r] + LROW
    if r == 6:
        return PAIR_BASE[0] + LROW, PAIR_BASE[6] + LROW
    return PAIR_BASE[1] + LROW, PAIR_BASE[6]


def stg_off(q):
    return STG_BASE[(q >> 1) & 1] + (q & 1) * 3072


def stage_write_ops(o, ct, t):
    q = o * 3 + ct
    a = acc(o, ct, t)
    return [Op("v_cvt_pk_bf16_f32 v%d, v%d, v%d" % (a, a, a + 1)),
            Op("v_cvt_pk_bf16_f32 v%d, v%d, v%d" % (a + 1, a + 2, a + 3)),
            Op("ds_write_b64 v%d, v[%d:%d] offset:%d" % (V_SW[t & 1], a, a + 1, stg_off(q) + (64 if t == 2 else 0)),
               kind="l", tag=("sw", q, t), sync=True, cost=12, after=12)]


def tile_goff(q):
    o, ct = divmod(q, 3)
    return o * ROWB + ct * 3072


def pair_read_ops(u):
    return [Op("ds_read_b128 v[%d:%d], v%d offset:%d" % (V_RB + 4 * i, V_RB + 4 * i + 3, V_SR[i], STG_BASE[u & 1]),
               kind="l", tag=("sr", u, i), sync=True, cost=8) for i in range(3)]


def pair_store_ops(u, cfg):
    q = 2 * u
    pol = cfg.get("opol", " sc0 sc1")
    same_row = (q % 3) != 2
    ops = [Op("s_add_u32 s%d, s%d, %d" % (S_ST, S_OA if same_row else S_OB, tile_goff(q)))]
    for i in range(3):
        ops.append(Op("buffer_store_dwordx4 v[%d:%d], v%d, s[%d:%d], s%d offen offset:%d%s" % (V_RB + 4 * i, V_RB + 4 * i + 3, V_ST, SRD_O, SRD_O + 3, S_ST, 1024 * i, pol),
                      kind="v", need_l=[("sr", u, i)], cost=12, after=cfg.get("st_after", 12)))
    return ops


def half_read_ops(q, rb):
    return [Op("ds_read_b128 v[%d:%d], v%d offset:%d" % (rb + 4 * i, rb + 4 * i + 3, V_SH[i], stg_off(q)),
               kind="l", tag=("hr", q, i), sync=True, cost=8) for i in range(2)]


def half_store_ops(q, rb, cfg):
    pol = cfg.get("opol", " sc0 sc1")
    ops = [Op("s_add_u32 s%d, s%d, %d" % (S_ST, S_OH, tile_goff(q)))]
    ops.append(Op("buffer_store_dwordx4 v[%d:%d], v%d, s[%d:%d], s%d offen%s" % (rb, rb + 3, V_ST, SRD_O, SRD_O + 3, S_ST, pol),
                  kind="v", need_l=[("hr", q, 0)], cost=12, after=12))
    ops.append(Op("s_mov_b32 exec_hi, 0\nbuffer_store_dwordx4 v[%d:%d], v%d, s[%d:%d], s%d offen offset:1024%s\ns_mov_b32 exec_hi, -1" % (rb + 4, rb + 7, V_ST, SRD_O, SRD_O + 3, S_ST, pol),
                  kind="v", need_l=[("hr", q, 1)], cost=12, after=12))
    return ops


def stamp(i):
    return [Op("s_memtime s[%d:%d]" % (S_STAMP + 2 * i, S_STAMP + 2 * i + 1))]


def generate(cfg):
    E = Emitter()
    E.filt = cfg.get("filt", [])
    R = E.raw
    dbg = cfg.get("stamps", False)
    names = ["start"]
    ROW_ORDER = cfg.get("rows", [2, 0, 1, 3, 4, 5, 6, 7])

    def st(name):
        if not dbg:
            return []
        names.append(name)
        assert len(names) <= 18
        return stamp(len(names) - 1)

    E.lines.append("L_start:")
    if dbg:
        R("s_memtime s[%d:%d]" % (S_STAMP, S_STAMP + 1))
        R("s_memrealtime s[%d:%d]" % (S_STAMP + 36, S_STAMP + 37))
        R("s_load_dwordx2 s[56:57], s[0:1], 40")
    R("s_load_dwordx8 s[4:11], s[0:1], 0")
    R("s_cmp_ge_u32 s2, 256")
    R("s_cbranch_scc1 L_end")
    R("v_lshrrev_b32 v%d, 6, v0" % V_T0)
    R("v_and_b32 v0, 63, v0")
    R("v_readfirstlane_b32 s%d, v%d" % (S_WAVE, V_T0))
    R("s_and_b32 s%d, s2, 7" % S_TC)
    R("s_lshr_b32 s%d, s2, 3" % S_TR)
    R("s_and_b32 s%d, s%d, 1" % (S_H, S_WAVE))
    R("s_lshr_b32 s%d, s%d, 1" % (S_P, S_WAVE))
    R("s_mul_i32 s%d, s%d, 4800" % (S_W4800, S_WAVE))
    R("s_mul_i32 s%d, s%d, 4608" % (S_W4608, S_WAVE))
    R("s_mul_i32 s%d, s%d, 288" % (S_T0, S_WAVE))
    R("s_lshl_b32 s%d, s%d, 1" % (S_T1, S_H))
    R("v_add_u32 v%d, s%d, v0" % (V_T0, S_T0))
    R("v_xor_b32 v%d, s%d, v%d" % (V_T0, S_T1, V_T0))
    R("v_lshlrev_b32 v%d, 4, v%d" % (V_W[0], V_T0))
    R("v_xor_b32 v%d, 32, v%d" % (V_W[2], V_W[0]))
    R("v_and_b32 v%d, 32, v0" % V_T1)
    R("v_xor_b32 v%d, v%d, v%d" % (V_W[1], V_T1, V_W[0]))
    R("s_mul_i32 s%d, s%d, %d" % (S_XB, S_TR, 12 * ROWB))
    R("s_mul_i32 s%d, s%d, %d" % (S_T0, S_TC, 48 * 192))
    R("s_add_u32 s%d, s%d, s%d" % (S_OBASE, S_XB, S_T0))
    R("s_sub_u32 s%d, s%d, %d" % (S_XB, S_OBASE, ROWB))
    R("s_mul_i32 s%d, s%d, %d" % (S_T0, S_P, 6 * ROWB))
    R("s_add_u32 s%d, s%d, s%d" % (S_XP, S_XB, S_T0))
    R("s_add_u32 s%d, s%d, s%d" % (S_OBASE, S_OBASE, S_T0))
    R("s_or_b32 s%d, s%d, s%d" % (S_T0, S_TR, S_P))
    R("s_cmp_eq_u32 s%d, 0" % S_T0)
    R("s_cselect_b32 s%d, %d, s%d" % (S_X0, HUGE, S_XP))
    R("s_mul_i32 s%d, s%d, 300" % (S_T0, S_H))
    R("s_movk_i32 s%d, 1366" % S_T1)
    R("v_add_u32 v%d, s%d, v0" % (V_T0, S_T0))
    for jj, o in enumerate((0, 64, 128, 192, 236)):
        R("v_add_u32 v%d, %d, v%d" % (V_T1, o, V_T0))
        R("v_mul_u32_u24 v%d, s%d, v%d" % (V_T1, S_T1, V_T1))
        R("v_lshrrev_b32 v%d, 15, v%d" % (V_T1, V_T1))
        R("v_and_b32 v%d, 2, v%d" % (V_T1, V_T1))
        R("v_xor_b32 v%d, v%d, v%d" % (V_T1, V_T1, V_T0))
        R("v_lshlrev_b32 v%d, 4, v%d" % (V_X[jj], V_T1))
    R("s_or_b32 s%d, s%d, s%d" % (S_T0, S_TC, S_H))
    R("s_cmp_eq_u32 s%d, 0" % S_T0)
    R("s_cselect_b32 s%d, 12, 0" % S_T0)
    R("v_mov_b32 v%d, %d" % (V_T1, HUGE))
    R("v_cmp_gt_u32 vcc, s%d, v0" % S_T0)
    R("s_lshl_b32 s%d, s%d, 3" % (S_T0, S_H))
    R("s_or_b32 s%d, s%d, s%d" % (S_T0, S_T0, S_TC))
    R("v_cndmask_b32 v%d, v%d, v%d, vcc" % (V_X[0], V_X[0], V_T1))
    R("s_cmp_eq_u32 s%d, 15" % S_T0)
    R("s_cselect_b32 s%d, 52, 64" % S_T0)
    R("v_cmp_le_u32 vcc, s%d, v0" % S_T0)
    R("v_lshrrev_b32 v%d, 4, v0" % V_T2)
    R("s_mul_i32 s%d, s%d, 96" % (S_T2, S_H))
    R("v_cndmask_b32 v%d, v%d, v%d, vcc" % (V_X[4], V_X[4], V_T1))
    R("v_lshlrev_b32 v%d, 3, v%d" % (V_T3, V_T2))
    R("v_add_u32 v%d, s%d, v%d" % (V_T3, S_T2, V_T3))
    R("s_lshl_b32 s%d, s%d, 2" % (S_T0, S_TR))
    R("s_add_u32 s%d, s%d, s%d" % (S_T0, S_T0, S_WAVE))
    R("s_mul_i32 s%d, s%d, %d" % (S_T1, S_T0, 11 * 128))
    R("s_lshl_b32 s%d, s%d, 8" % (S_T2, S_T0))
    R("v_lshlrev_b32 v%d, 7, v0" % V_T4)
    R("v_add_u32 v%d, s%d, v%d" % (V_T5, S_T2, V_T4))
    R("v_min_u32 v%d, L_end-L_pc, v%d" % (V_T5, V_T5))
    R("s_getpc_b64 s[%d:%d]" % (S_PC, S_PC + 1))
    E.lines.append("L_pc:")
    R("s_mov_b32 s%d, %d" % (SRD_W + 2, 9 * TAPB))
    R("s_mov_b32 s%d, 0x20000" % (SRD_W + 3))
    R("s_mov_b32 s%d, %d" % (SRD_X + 2, XBYTES + 192))
    R("s_mov_b32 s%d, 0x20000" % (SRD_X + 3))
    R("s_mov_b32 s%d, 192" % (SRD_B + 2))
    R("s_mov_b32 s%d, 0x20000" % (SRD_B + 3))
    R("s_waitcnt lgkmcnt(0)")
    for op in st("karg"): E.emit(op)
    R("s_mov_b32 s%d, s%d" % (SRD_W, S_W))
    R("s_mov_b32 s%d, s%d" % (SRD_W + 1, S_W + 1))
    R("s_sub_u32 s%d, s%d, 192" % (SRD_X, S_X))
    R("s_subb_u32 s%d, s%d, 0" % (SRD_X + 1, S_X + 1))
    R("s_mov_b32 s%d, s%d" % (SRD_B, S_B))
    R("s_mov_b32 s%d, s%d" % (SRD_B + 1, S_B + 1))
    def issue(toks):
        for tok in toks:
            if tok == "b":
                for t in range(3):
                    b = V_BIAS + 4 * t + 2
                    E.emit(Op("buffer_load_dwordx2 v[%d:%d], v%d, s[%d:%d], 0 offen offset:%d" % (b, b + 1, V_T3, SRD_B, SRD_B + 3, 32 * t),
                              kind="v", tag=("bias", t)))
            elif tok == "w":
                R("s_mov_b64 exec, 0x7ff")
                E.emit(Op("buffer_load_dword v%d, v%d, s[%d:%d], s%d offen" % (V_PF, V_T4, SRD_W, SRD_W + 3, S_T1), kind="v"))
                R("s_mov_b64 exec, -1")
            elif tok == "c":
                R("s_mov_b64 exec, 3")
                E.emit(Op("global_load_dword v%d, v%d, s[%d:%d]" % (V_PF + 1, V_T5, S_PC, S_PC + 1), kind="v", tag=("pf",)))
                R("s_mov_b64 exec, -1")
            elif "." in tok:
                for op in piece_ops(tok, cfg):
                    E.emit(op)
            else:
                ops = tap_load_ops(int(tok[1]), cfg) if tok[0] == "t" else row_load_ops(int(tok[1]), cfg)
                for op in seq_with_m0_nop(ops):
                    E.emit(op)

    issue(cfg.get("first", ["t0", "b", "p2", "w", "c"]))
    for op in st("iss1"): E.emit(op)
    R("s_mov_b32 s%d, s%d" % (SRD_O, S_O))
    R("s_mov_b32 s%d, s%d" % (SRD_O + 1, S_O + 1))
    R("s_mov_b32 s%d, %d" % (SRD_O + 2, XBYTES))
    R("s_mov_b32 s%d, 0x20000" % (SRD_O + 3))
    R("v_and_b32 v%d, 15, v0" % V_T0)
    R("s_movk_i32 s%d, 192" % S_T1)
    R("s_mul_i32 s%d, s%d, %d" % (S_RB, S_P, LROW))
    for dx in range(3):
        R("v_add_u32 v%d, %d, v%d" % (V_T1, dx, V_T0))
        R("v_lshrrev_b32 v%d, 1, v%d" % (V_T4, V_T1))
        R("v_and_b32 v%d, 2, v%d" % (V_T4, V_T4))
        R("v_xor_b32 v%d, v%d, v%d" % (V_T4, V_T4, V_T2))
        R("v_lshlrev_b32 v%d, 4, v%d" % (V_T4, V_T4))
        R("v_mad_u32_u24 v%d, v%d, s%d, v%d" % (V_T4, V_T1, S_T1, V_T4))
        R("v_add_u32 v%d, s%d, v%d" % (V_B[dx], S_RB, V_T4))
    R("s_mul_i32 s%d, s%d, 6144" % (S_T2, S_P))
    R("v_mul_u32_u24 v%d, s%d, v%d" % (V_T1, S_T1, V_T0))
    R("v_add_u32 v%d, s%d, v%d" % (V_T1, S_T2, V_T1))
    R("v_bfe_u32 v%d, v0, 4, 1" % V_T4)
    R("v_lshl_add_u32 v%d, v%d, 3, v%d" % (V_T1, V_T4, V_T1))
    R("v_bfe_u32 v%d, v0, 1, 2" % V_T4)
    R("s_mul_i32 s%d, s%d, 6" % (S_T0, S_H))
    R("v_lshrrev_b32 v%d, 5, v0" % V_T5)
    R("v_add_u32 v%d, s%d, v%d" % (V_T5, S_T0, V_T5))
    for par in range(2):
        R("v_add_u32 v%d, %d, v%d" % (V_T6, 2 * par, V_T5))
        R("v_xor_b32 v%d, v%d, v%d" % (V_T6, V_T6, V_T4))
        R("v_lshl_add_u32 v%d, v%d, 4, v%d" % (V_SW[par], V_T6, V_T1))
    R("s_mul_i32 s%d, s%d, 3072" % (S_T0, S_WAVE))
    R("s_movk_i32 s%d, 2731" % S_T2)
    for i in range(3):
        R("v_add_u32 v%d, %d, v0" % (V_T5, 64 * i))
        R("v_mul_u32_u24 v%d, s%d, v%d" % (V_T6, S_T2, V_T5))
        R("v_bfe_u32 v%d, v%d, 16, 2" % (V_T6, V_T6))
        R("v_xor_b32 v%d, v%d, v%d" % (V_T6, V_T6, V_T5))
        R("v_lshlrev_b32 v%d, 4, v%d" % (V_T6, V_T6))
        R("v_add_u32 v%d, s%d, v%d" % (V_SR[i], S_T0, V_T6))
    R("v_lshlrev_b32 v%d, 4, v0" % V_ST)
    R("v_bfe_u32 v%d, v0, 2, 2" % V_T0)
    R("v_lshl_add_u32 v%d, v%d, 3, v%d" % (V_T0, V_T2, V_T0))
    R("v_mul_u32_u24 v%d, s%d, v%d" % (V_T0, S_T1, V_T0))
    R("v_and_b32 v%d, 1, v0" % V_T1)
    R("v_lshl_add_u32 v%d, v%d, 3, v%d" % (V_T0, V_T1, V_T0))
    R("v_bfe_u32 v%d, v0, 1, 1" % V_T1)
    R("s_mul_i32 s%d, s%d, 6" % (S_T0, S_H))
    R("v_add_u32 v%d, s%d, v%d" % (V_T1, S_T0, V_T1))
    R("v_bfe_u32 v%d, v0, 4, 1" % V_T4)
    R("v_lshlrev_b32 v%d, 1, v%d" % (V_T4, V_T4))
    for par in range(2):
        R("v_add_u32 v%d, %d, v%d" % (V_T3, 2 * par, V_T1))
        R("v_xor_b32 v%d, v%d, v%d" % (V_T3, V_T3, V_T4))
        R("v_lshl_add_u32 v%d, v%d, 4, v%d" % (V_T3, V_T3, V_T0))
        R("v_add_u32 v%d, %d, v%d" % (V_TR[par], TR_REG[0], V_T3))
    issue(cfg.get("second", ["t1", "t2"]))
    for op in st("iss2"): E.emit(op)

    frags = []; fidx = {}
    mf = []
    step_start = []

    def fr(k, r, ct, dx, kc):
        key = (k, r, ct, dx, kc)
        if key not in fidx:
            fidx[key] = len(frags); frags.append(key)
        return fidx[key]

    done_rows = set()
    for k, r in enumerate(ROW_ORDER):
        step_start.append(len(mf))
        if k == 0:
            for dx in range(3):
                for dy in range(3):
                    for ct in range(3):
                        for t in range(3):
                            for kc in range(3):
                                mf.append((fr(k, r, ct, dx, kc), dy, t))
        else:
            dys = [dy for dy in range(3) if 0 <= r - dy <= 5]
            def rank(dy):
                o = r - dy
                others = [o + d for d in range(3) if d != dy]
                return -sum(1 for x in others if x in done_rows)
            dys.sort(key=rank)
            for ct in range(3):
                for dy in dys:
                    for t in range(3):
                        for dx in range(3):
                            for kc in range(3):
                                mf.append((fr(k, r, ct, dx, kc), dy, t))
        done_rows.add(r)
    NM = len(mf)
    assert NM == 1458
    step_start.append(NM)
    first_use = {}; last_use = {}
    last_of = {}; first_of = {}; first_flags = []
    for i, (fi, dy, t) in enumerate(mf):
        first_use.setdefault(fi, i); last_use[fi] = i
        k, r, ct, dx, kc = frags[fi]
        key = (r - dy, ct, t)
        last_of[key] = i
        first_flags.append(key not in first_of)
        first_of.setdefault(key, i)

    CAP = 12
    side = [[] for _ in range(NM + 2)]
    used = [0] * (NM + 3)

    def force(pos, ops):
        for op in ops:
            side[pos].append(op); used[pos] += op.cost

    def sched(ops, start, step=0, cap=CAP, vstep=None, dry=False):
        p = start; first = None
        tmp = {}
        for op in ops:
            while p <= NM and used[p] + tmp.get(p, 0) + op.cost > cap:
                p += 1
            assert p <= NM, op.text
            if dry:
                tmp[p] = tmp.get(p, 0) + op.cost
                tmp[p + 1] = tmp.get(p + 1, 0) + op.after
            else:
                side[p].append(op); used[p] += op.cost
                used[p + 1] += op.after
            if first is None: first = p
            last = p
            p += vstep if (vstep is not None and op.kind == "v") else step
        return first, last

    dlt = cfg.get("tdelta", 2)
    bt = {i: 27 * (i - 1) + dlt for i in range(1, 9)}
    for kk, vv in cfg.get("bt", {}).items():
        bt[int(kk)] = vv
    bars = []

    def barrier(pos, vt, name=None):
        op = Op("s_barrier", kind="b", need_v=vt, cost=4)
        side[pos].insert(0, op); used[pos] += 4
        bars.append(pos)
        if name and dbg:
            side[pos].insert(1, st(name)[0])
        return op

    for i in range(1, 9):
        barrier(bt[i], [("tap", i)], "Bt%d" % i if i in (1, 8) else None)

    WLAG = 9
    beta = {}
    for u in range(8):
        q = 2 * u + 1
        o, ct = divmod(q, 3)
        beta[u] = last_of[(o, ct, 2)] + WLAG + (cfg.get("beta_lag", 12) if u < 7 else 8)
    q16 = last_of[(5, 1, 2)] + WLAG + 8
    pair_of_row = {0: 0, 1: 1, 3: 3, 4: 4, 5: 5, 6: 6}
    LEAD = cfg.get("lead", 40)
    row_bar = {}
    beta_ops = {}
    for u in range(8):
        beta_ops[u] = barrier(beta[u], [], "b%d" % u if u in (0, 2, 4, 6, 7) else None)
    barrier(q16, [], None)
    for k in range(1, 8):
        r = ROW_ORDER[k]
        want = step_start[k] - (cfg.get("lead1", 16) if k <= 2 else LEAD)
        if r not in pair_of_row:
            row_bar[k] = want
            continue
        cands = [u for u in range(8) if want - cfg.get("bwin", 130) <= beta[u] <= want + 15]
        if cands:
            u = cands[-1]
            beta_ops[u].need_v.append(("pair", pair_of_row[r]))
            row_bar[k] = max(beta[u], want)
        else:
            if k == 1:
                want = max(want, bt[8] + 22)
            barrier(want, [("pair", pair_of_row[r])], "B%d" % k)
            row_bar[k] = want
    bars.sort()
    tap_free = row_bar[1]

    pool = [(V_FR + 4 * i, 0) for i in range(12)]
    extra = []
    w_pos = {}
    tail_w = []
    for q in range(18):
        o, ct = divmod(q, 3)
        for t in range(3):
            p0 = last_of[(o, ct, t)] + WLAG
            if q // 2 >= 2:
                p0 = max(p0, beta[q // 2 - 1] + 1)
            if p0 + 3 > NM:
                tail_w.append((o, ct, t)); continue
            f, l = sched(stage_write_ops(o, ct, t), p0)
            w_pos[(q, t)] = (f, l)
            nxt = [first_of[(o2, ct, t)] for o2 in range(o + 1, 6) if ACC_SET[o2] == ACC_SET[o]]
            if nxt:
                assert l < min(nxt), (q, t, l, nxt)
    for u in range(8):
        assert w_pos[(2 * u + 1, 2)][1] < beta[u], (u, w_pos[(2 * u + 1, 2)], beta[u])
        if u >= 2:
            assert w_pos[(2 * u, 0)][1] > beta[u - 1], (u,)
    assert w_pos[(16, 2)][1] < q16 and w_pos[(16, 0)][1] > beta[7]
    assert w_pos[(0, 0)][1] > tap_free
    if cfg.get("extra_bufs", True):
        for ct in (1, 2):
            for t in range(3):
                pool.append((acc(0, ct, t), w_pos[(ct, t)][1] + 2))

    dma = cfg.get("dma", [(0, "t4"), (20, "t5"), (40, "t6"), (60, "t7"), (80, "t8"), (100, "p0"), (165, "p1"),
                          (250, "p3"), (330, "p4"), (500, "p5"), (740, "p6")])
    prev_end = 0
    for (p, tok) in dma:
        n = int(tok[1])
        p = max(p, prev_end + 1)
        if tok[0] == "t":
            if n in TAP_PREV:
                assert p > bt[TAP_PREV[n] + 1], (tok, p)
            f, prev_end = sched(tap_load_ops(n, cfg), p, vstep=cfg.get('vstep', 4))
            assert prev_end < bt[n], (tok, prev_end, bt[n])
        else:
            if n >= 3:
                assert p > tap_free
            if n == 1:
                assert p > bt[7]
            f, prev_end = sched(row_load_ops(n, cfg), p, vstep=cfg.get('vstep', 4))
        if dbg or cfg.get("verbose"):
            print("dma", tok, f, prev_end, file=sys.stderr)

    fbuf = {}
    PFD = cfg.get("pfd", 60)
    prev = 0
    cur_bank = (0, LROW)
    pre_reads = []
    for fi, (k, r, ct, dx, kc) in enumerate(frags):
        pool.sort(key=lambda x: x[1])
        reg, free = pool.pop(0)
        fbuf[fi] = reg
        pool.append((reg, last_use[fi] + 1))
        a, b = read_base(r)
        ops = []
        rel = a - cur_bank[0]
        if not (b - a == cur_bank[1] - cur_bank[0] and 0 <= rel <= 65535 - 6400):
            d0 = (a - cur_bank[0]) & 0xFFFFFFFF
            d1 = ((b - cur_bank[1]) - (a - cur_bank[0])) & 0xFFFFFFFF
            if d1 == 0:
                for d in range(3):
                    ops.append(Op("v_add_u32 v%d, 0x%x, v%d" % (V_B[d], d0, V_B[d])))
            else:
                ops.append(Op("s_mul_i32 s%d, s%d, 0x%x" % (S_RB, S_P, d1)))
                ops.append(Op("s_add_u32 s%d, s%d, 0x%x" % (S_RB, S_RB, d0)))
                for d in range(3):
                    ops.append(Op("v_add_u32 v%d, s%d, v%d" % (V_B[d], S_RB, V_B[d])))
            cur_bank = (a, b); rel = 0
        rd = Op("ds_read_b128 v[%d:%d], v%d offset:%d" % (reg, reg + 3, V_B[dx], rel + ct * 3072 + kc * 64), kind="l", tag=("f", fi), cost=8)
        if fi < cfg.get("npre", 9):
            pre_reads.append(rd); continue
        p0 = max(free, first_use[fi] - PFD, prev, row_bar.get(k, 0))
        if ops:
            sched(ops, max(prev, p0 - 6))
        f, l = sched([rd], p0)
        assert l < first_use[fi], (fi, l, first_use[fi])
        prev = l
        if first_use[fi] - l < cfg.get("warn_dist", 10):
            print("short prefetch distance", fi, frags[fi], first_use[fi] - l, file=sys.stderr)

    for i in range(1, 9):
        ops = tr_ops(i)
        dead = 27 * i - cfg.get("trdead", 2)
        n_over = 0
        while True:
            save_used = list(used); save_side = [list(x) for x in side]
            f, l = (bt[i], bt[i])
            if n_over:
                f, l = sched(ops[:n_over], bt[i], cap=16)
            if n_over < len(ops):
                f2, l = sched(ops[n_over:], l)
            if l <= dead or n_over >= len(ops):
                break
            used[:] = save_used
            for a in range(len(side)): side[a][:] = save_side[a]
            n_over += 2
        if dbg or cfg.get("verbose"):
            print("tr", i, bt[i], l, "over", n_over, file=sys.stderr)

    late = [Op("s_mul_i32 s%d, s%d, 3072" % (S_OA, S_H)), Op("s_add_u32 s%d, s%d, s%d" % (S_OA, S_OA, S_OBASE)),
            Op("s_mul_i32 s%d, s%d, %d" % (S_OB, S_H, ROWB - 6144)), Op("s_add_u32 s%d, s%d, s%d" % (S_OB, S_OB, S_OBASE)),
            Op("s_mul_i32 s%d, s%d, 1536" % (S_OH, S_H)), Op("s_add_u32 s%d, s%d, s%d" % (S_OH, S_OH, S_OBASE))]
    late += [Op("s_mul_i32 s%d, s%d, 96" % (S_T0, S_H)), Op("s_movk_i32 s%d, 2731" % S_T2), Op("s_mul_i32 s%d, s%d, 6144" % (S_T1, S_P))]
    for i in range(2):
        if i:
            late.append(Op("s_add_u32 s%d, s%d, 64" % (S_T0, S_T0)))
        late += [Op("v_add_u32 v%d, s%d, v0" % (V_TR[0], S_T0)),
                 Op("v_mul_u32_u24 v%d, s%d, v%d" % (V_TR[1], S_T2, V_TR[0])),
                 Op("v_bfe_u32 v%d, v%d, 16, 2" % (V_TR[1], V_TR[1])),
                 Op("v_xor_b32 v%d, v%d, v%d" % (V_TR[1], V_TR[1], V_TR[0])),
                 Op("v_lshlrev_b32 v%d, 4, v%d" % (V_TR[1], V_TR[1])),
                 Op("v_add_u32 v%d, s%d, v%d" % (V_SH[i], S_T1, V_TR[1]))]
    f, l = sched(late, 260, step=1)
    assert l < beta[0]

    for u in range(8):
        f, l = sched(pair_read_ops(u), beta[u] + 1)
        f2, l2 = sched(pair_store_ops(u, cfg), l + cfg.get("rgap", 8), step=cfg.get("ststep", 4))
        nb = beta[u + 1] if u < 7 else q16
        assert l2 < nb, (u, l2, nb)
    f, l = sched(half_read_ops(16, V_RB), q16 + 1)
    tail16 = True
    if l + 6 + 4 <= NM:
        sched(half_store_ops(16, V_RB, cfg), l + 6)
        tail16 = False

    E.emit(Op("s_barrier", kind="b", need_v=[("tap", 0)]))
    for op in st("Ba"): E.emit(op)
    for op in tr_ops(0):
        E.emit(op)
    fst = True
    for t in range(3):
        b = V_BIAS + 4 * t
        E.emit(Op("v_lshlrev_b32 v%d, 16, v%d" % (b, b + 2), need_v=[("bias", 2)] if fst else []))
        fst = False
        E.emit(Op("v_and_b32 v%d, 0xffff0000, v%d" % (b + 1, b + 2)))
        E.emit(Op("v_lshlrev_b32 v%d, 16, v%d" % (b + 2, b + 3)))
        E.emit(Op("v_and_b32 v%d, 0xffff0000, v%d" % (b + 3, b + 3)))
    issue(cfg.get("third", ["t3"]))
    E.emit(Op("s_barrier", kind="b", need_v=[("pair", 2)]))
    for op in st("Bt0"): E.emit(op)
    if dbg: R("s_memrealtime s[50:51]")
    for op in pre_reads:
        E.emit(op)

    for i, (fi, dy, t) in enumerate(mf):
        for op in side[i]:
            E.emit(op)
        k, r, ct, dx, kc = frags[fi]
        o = r - dy
        d = acc(o, ct, t)
        c, rg = wreg(dy, dx, kc, t)
        fb = fbuf[fi]
        srcc = (V_BIAS + 4 * t) if first_flags[i] else d
        E.emit(Op("v_mfma_f32_16x16x32_bf16 v[%d:%d], %s[%d:%d], v[%d:%d], v[%d:%d]" % (d, d + 3, c, rg, rg + 3, fb, fb + 3, srcc, srcc + 3),
                  kind="m", need_l=[("f", fi), ("w", dy, dx, kc, t, 1)]))
    for op in side[NM]:
        E.emit(op)
    for op in st("mfma_end"): E.emit(op)
    if dbg: R("s_memrealtime s[58:59]")
    if tail16:
        for op in half_store_ops(16, V_RB, cfg):
            E.emit(op)
        R("s_nop 3")
    else:
        R("s_nop 7")
    for (o, ct, t) in tail_w:
        for op in stage_write_ops(o, ct, t):
            E.emit(op)
    E.emit(Op("s_barrier", kind="b"))
    rb2 = acc(0, 1, 0)
    for op in half_read_ops(17, rb2) + half_store_ops(17, rb2, cfg):
        E.emit(op)
    if dbg:
        for op in st("st_iss"): E.emit(op)
        R("s_waitcnt vmcnt(0)")
        for op in st("st_done"): E.emit(op)
        R("s_memrealtime s[%d:%d]" % (S_STAMP + 38, S_STAMP + 39))
        R("s_waitcnt lgkmcnt(0)")
        R("s_mov_b32 s52, s56"); R("s_mov_b32 s53, s57"); R("s_mov_b32 s54, 0x100000"); R("s_mov_b32 s55, 0x20000")
        R("s_lshl_b32 s%d, s2, 2" % S_T0)
        R("s_add_u32 s%d, s%d, s%d" % (S_T0, S_T0, S_WAVE))
        R("s_mul_i32 s%d, s%d, 256" % (S_T0, S_T0))
        for j in range(40):
            R("v_mov_b32 v%d, s%d" % (64 + j, S_STAMP + j))
        R("v_mov_b32 v104, s50"); R("v_mov_b32 v105, s51"); R("v_mov_b32 v106, s58"); R("v_mov_b32 v107, s59")
        R("v_mov_b32 v1, 0")
        R("s_mov_b64 exec, 1")
        for j in range(11):
            R("buffer_store_dwordx4 v[%d:%d], v1, s[52:55], s%d offen offset:%d" % (64 + 4 * j, 67 + 4 * j, S_T0, 16 * j))
    E.lines.append("L_end:")
    R("s_endpgm")
    info = dict(names=names, bars=bars, bs=dict(beta=beta, row_bar=row_bar, q16=q16), step_start=step_start, tail_w=tail_w, tail16=tail16)
    return HEADER + "\n".join(E.lines) + "\n" + FOOTER, info


if __name__ == "__main__":
    import json
    out = sys.argv[1]
    cfg = json.loads(sys.argv[2]) if len(sys.argv) > 2 else {}
    txt, info = generate(cfg)
    open(out, "w").write(txt)
    open(out + ".info", "w").write(json.dumps(info))
    print(info)
```

```python
import sys

KN = "standalone__standard_2d_1d_3d_conv__vision_kernel"
XBYTES = 384 * 384 * 192
ROWB = 384 * 192
TAPB = 96 * 192
LROW = 9600
HUGE = 0x40000000

HEADER = """; Kernarg layout for this problem (48 bytes, ptrs only, base s[0:1]):
;   offset   0: d_in[0] x  shape=(1, 384, 384, 96) dtype=bfloat16 strides=(28311552, 73728, 192, 2) contiguous=True
;   offset   8: d_in[1] w  shape=(3, 3, 96, 96) dtype=bfloat16 strides=(55296, 18432, 192, 2) contiguous=True
;   offset  16: d_in[2] b  shape=(96,) dtype=bfloat16 strides=(2,) contiguous=True
;   offset  24: d_out     shape=(1, 384, 384, 96) dtype=bfloat16 (2 bytes/elem)
;   offset  32: d_debug   256 bytes
;   offset  40: d_ws      268435456 bytes workspace
; Generated by tools/gen4.py (own generator script).
; @launch grid=(256,1,1) block=(256,1,1) lds=163840
.amdgcn_target "amdgcn-amd-amdhsa--gfx950"
.text
.globl %s
.p2align 12
.p2align 8
.type %s,@function
%s:
""" % (KN, KN, KN)

FOOTER = """.section .rodata,"a"
.p2align 6
.amdhsa_kernel %s
  .amdhsa_next_free_vgpr 512
  .amdhsa_next_free_sgpr 102
  .amdhsa_accum_offset 256
  .amdhsa_group_segment_fixed_size 0
  .amdhsa_kernarg_size 48
  .amdhsa_float_denorm_mode_32 3
  .amdhsa_user_sgpr_count 2
  .amdhsa_user_sgpr_kernarg_segment_ptr 1
  .amdhsa_system_sgpr_workgroup_id_x 1
.end_amdhsa_kernel
""" % KN

S_X, S_W, S_B, S_O = 4, 6, 8, 10
SRD_X, SRD_W, SRD_B, SRD_O = 12, 16, 20, 24
S_WAVE, S_H, S_P = 28, 29, 30
S_XP, S_XB = 31, 32
S_XM, S_W4608 = 33, 34
S_OBASE = 35
S_T0, S_T1, S_T2 = 36, 37, 38
S_X0 = 39
S_RB = 40
S_TC, S_TR = 41, 42
S_ST = 43
S_XS, S_WS = 46, 47
S_PC = 48
S_OA, S_OB = 20, 21
S_OH = 22
S_PFW = 44
S_BM = 45
BIAS_LDS = 153600
S_STAMP = 60

V_B = [1, 2, 3]
V_X = [4, 5, 6, 7, 8]
V_W = [9, 10, 11]
V_TR = [12, 13]
V_SW = [14, 15]
V_SR = [16, 17, 18]
V_ST = 19
V_SH = [9, 10]
V_BIAS = 20
V_FR = 32
V_WV = 80
V_ACC = 148
V_T0, V_T1, V_T2, V_T3, V_T4, V_T5, V_T6, V_T7, V_T8, V_T9, V_T10, V_T11 = range(244, 256)
V_BO = 243
V_PF = 146

PAIR_BASE = {2: 0, 1: 19200, 0: 38400, 3: 76800, 4: 96000, 5: 115200, 6: 134400}
TS = [57600 + TAPB * i for i in range(5)]
TAP_BASE = [19200, TS[0], TS[1], TS[2], TS[3], TS[4], 19200, TS[0], TS[1]]
TAP_PREV = {6: 0, 7: 1, 8: 2}
TR_REG = [19200, 19200, TS[1], TS[1], TS[1], TS[4], 19200, 19200, TS[1]]
STG_BASE = [0, 57600]
ACC_SET = {0: 0, 1: 1, 2: 2, 3: 1, 4: 2, 5: 1}


def ta_of(dy, dx):
    return dx * 3 + dy


def wreg(dy, dx, kc, t):
    f = (ta_of(dy, dx) * 3 + kc) * 3 + t
    if f < 64:
        return "a", 4 * f
    return "v", V_WV + 4 * (f - 64)


def acc(o, ct, t):
    return V_ACC + ((ACC_SET[o] * 3 + ct) * 3 + t) * 4


V_RB = acc(0, 0, 0)


class Op:
    def __init__(self, text, kind="p", tag=None, need_l=(), need_v=(), sync=False, cost=4, after=0):
        self.text = text
        self.kind = kind
        self.tag = tag
        self.need_l = list(need_l)
        self.need_v = list(need_v)
        self.sync = sync
        self.cost = cost
        self.after = after
        self.nosync = False


class Emitter:
    def __init__(self):
        self.lines = []
        self.l_seq = 0; self.l_idx = {}; self.l_done = 0
        self.v_seq = 0; self.v_idx = {}; self.v_done = 0
        self.last_sync = 0
        self.filt = []
        self.pos = -1000
        self.l_pos = [0]
        self.age = 12

    def raw(self, s):
        self.lines.append("    " + s)

    def emit(self, op):
        wl = None; wv = None
        ks = [self.l_idx[t] for t in op.need_l]
        if op.kind == "b" and not op.nosync:
            ks.append(self.last_sync)
        for k in ks:
            if k > self.l_done:
                while k < self.l_seq and self.l_pos[k + 1] <= self.pos - self.age:
                    k += 1
                n = min(self.l_seq - k, 14)
                wl = n if wl is None else min(wl, n)
        for t in op.need_v:
            k = self.v_idx[t]
            if k > self.v_done:
                n = min(self.v_seq - k, 62)
                wv = n if wv is None else min(wv, n)
        if wl is not None or wv is not None:
            s = "s_waitcnt"
            if wv is not None:
                s += " vmcnt(%d)" % wv
                self.v_done = max(self.v_done, self.v_seq - wv)
            if wl is not None:
                s += " lgkmcnt(%d)" % wl
                self.l_done = max(self.l_done, self.l_seq - wl)
            self.raw(s)
        if op.text:
            if any(op.text.startswith(x) for x in self.filt):
                if op.kind == "l" and op.tag is not None: self.l_idx[op.tag] = 0
                if op.kind == "v" and op.tag is not None: self.v_idx[op.tag] = 0
                return
            for ln in op.text.split("\n"):
                self.raw(ln)
        if op.kind == "l":
            self.l_seq += 1
            self.l_pos.append(self.pos)
            if op.tag is not None:
                self.l_idx[op.tag] = self.l_seq
            if op.sync:
                self.last_sync = self.l_seq
        elif op.kind == "v":
            self.v_seq += 1
            if op.tag is not None:
                self.v_idx[op.tag] = self.v_seq


ROW_START = (0, 128, 256, 384, 472)
ROW_IMM = (0, 2048, 0, 2048, 3456)
ROW_M0 = (0, 0, 4096, 4096, 4096)


def row_load_ops(n, cfg):
    ops = []
    pol = cfg.get("xpol", " nt")
    if n == 0:
        so = S_X0
    elif n <= 5:
        ops.append(Op("s_add_u32 s%d, s%d, %d" % (S_XS, S_XP, n * ROWB)))
        so = S_XS
    else:
        ops.append(Op("s_mul_i32 s%d, s%d, %d" % (S_XS, S_P, ROWB)))
        ops.append(Op("s_sub_u32 s%d, s%d, s%d" % (S_XS, S_XB, S_XS)))
        ops.append(Op("s_add_u32 s%d, s%d, %d" % (S_XS, S_XS, 13 * ROWB)))
        so = S_XS
    for jj in range(5):
        if jj in (0, 2):
            ops.append(Op("s_add_u32 m0, s%d, %d" % (S_XM, PAIR_BASE[n] + ROW_M0[jj])))
        ops.append(Op("buffer_load_dwordx4 v%d, s[%d:%d], s%d offen offset:%d%s lds" % (V_X[jj], SRD_X, SRD_X + 3, so, ROW_IMM[jj], pol),
                      kind="v", tag=("pair", n) if jj == 4 else ("pairp", n, jj), cost=12))
    return ops


def tap_load_ops(ta, cfg):
    dx, dy = divmod(ta, 3)
    pol = cfg.get("wpol", "")
    ops = []
    ops.append(Op("s_mov_b32 s%d, %d" % (S_WS, (dy * 3 + dx) * TAPB)))
    ops.append(Op("s_add_u32 m0, s%d, %d" % (S_W4608, TAP_BASE[ta])))
    for jj, (pt, off) in enumerate(((0, 0), (1, 1024), (2, 2048), (0, 3072), (0, 3584))):
        ops.append(Op("buffer_load_dwordx4 v%d, s[%d:%d], s%d offen offset:%d%s lds" % (V_W[pt], SRD_W, SRD_W + 3, S_WS, off, pol),
                      kind="v", tag=("tap", ta) if jj == 4 else None, cost=12))
    return ops


def seq_with_m0_nop(ops):
    out = []
    for op in ops:
        out.append(op)
        if op.text.startswith("s_add_u32 m0"):
            out.append(Op("s_nop 0"))
    return out


def piece_ops(tok, cfg):
    name, j = tok.split(".")
    j = int(j); n = int(name[1])
    if name[0] == "t":
        ops = tap_load_ops(n, cfg)
        pre = [op for op in ops if op.kind != "v"]
    else:
        ops = row_load_ops(n, cfg)
        pre = [op for op in ops if op.kind != "v" and not op.text.startswith("s_add_u32 m0")] if j == 0 else []
        pre.append(Op("s_add_u32 m0, s%d, %d" % (S_XM, PAIR_BASE[n] + ROW_M0[j])))
    vm = [op for op in ops if op.kind == "v"]
    return seq_with_m0_nop(pre + [vm[j]])


def tr_ops(ta):
    dx, dy = divmod(ta, 3)
    rel = TAP_BASE[ta] - TR_REG[ta]
    assert 0 <= rel <= 65535 - 13200
    ops = []
    if ta > 0 and TR_REG[ta - 1] != TR_REG[ta]:
        d = (TR_REG[ta] - TR_REG[ta - 1]) & 0xFFFFFFFF
        for par in range(2):
            ops.append(Op("v_add_u32 v%d, 0x%x, v%d" % (V_TR[par], d, V_TR[par])))
    for t in range(3):
        for kc in range(3):
            c, r = wreg(dy, dx, kc, t)
            for e2 in range(2):
                imm = rel + kc * 6144 + e2 * 768 + (64 if t == 2 else 0)
                ops.append(Op("ds_read_b64_tr_b16 %s[%d:%d], v%d offset:%d" % (c, r + 2 * e2, r + 2 * e2 + 1, V_TR[t & 1], imm),
                              kind="l", tag=("w", dy, dx, kc, t, e2), sync=True, cost=8))
    return ops


def read_base(r):
    if r <= 5:
        return PAIR_BASE[r], PAIR_BASE[r] + LROW
    if r == 6:
        return PAIR_BASE[0] + LROW, PAIR_BASE[6] + LROW
    return PAIR_BASE[1] + LROW, PAIR_BASE[6]


def stg_off(q):
    return STG_BASE[(q >> 1) & 1] + (q & 1) * 3072


def stage_write_ops(o, ct, t):
    q = o * 3 + ct
    a = acc(o, ct, t)
    return [Op("v_cvt_pk_bf16_f32 v%d, v%d, v%d" % (a, a, a + 1)),
            Op("v_cvt_pk_bf16_f32 v%d, v%d, v%d" % (a + 1, a + 2, a + 3)),
            Op("ds_write_b64 v%d, v[%d:%d] offset:%d" % (V_SW[t & 1], a, a + 1, stg_off(q) + (64 if t == 2 else 0)),
               kind="l", tag=("sw", q, t), sync=True, cost=12, after=12)]


def tile_goff(q):
    o, ct = divmod(q, 3)
    return o * ROWB + ct * 3072


def pair_read_ops(u):
    return [Op("ds_read_b128 v[%d:%d], v%d offset:%d" % (V_RB + 4 * i, V_RB + 4 * i + 3, V_SR[i], STG_BASE[u & 1]),
               kind="l", tag=("sr", u, i), sync=True, cost=8) for i in range(3)]


def pair_store_ops(u, cfg):
    q = 2 * u
    pol = cfg.get("opol", " sc0 sc1")
    same_row = (q % 3) != 2
    ops = [Op("s_add_u32 s%d, s%d, %d" % (S_ST, S_OA if same_row else S_OB, tile_goff(q)))]
    for i in range(3):
        ops.append(Op("buffer_store_dwordx4 v[%d:%d], v%d, s[%d:%d], s%d offen offset:%d%s" % (V_RB + 4 * i, V_RB + 4 * i + 3, V_ST, SRD_O, SRD_O + 3, S_ST, 1024 * i, pol),
                      kind="v", need_l=[("sr", u, i)], cost=12, after=cfg.get("st_after", 12)))
    return ops


def half_read_ops(q, rb):
    return [Op("ds_read_b128 v[%d:%d], v%d offset:%d" % (rb + 4 * i, rb + 4 * i + 3, V_SH[i], stg_off(q)),
               kind="l", tag=("hr", q, i), sync=True, cost=8) for i in range(2)]


def half_store_ops(q, rb, cfg):
    pol = cfg.get("opol", " sc0 sc1")
    ops = [Op("s_add_u32 s%d, s%d, %d" % (S_ST, S_OH, tile_goff(q)))]
    ops.append(Op("buffer_store_dwordx4 v[%d:%d], v%d, s[%d:%d], s%d offen%s" % (rb, rb + 3, V_ST, SRD_O, SRD_O + 3, S_ST, pol),
                  kind="v", need_l=[("hr", q, 0)], cost=12, after=12))
    ops.append(Op("s_mov_b32 exec_hi, 0\nbuffer_store_dwordx4 v[%d:%d], v%d, s[%d:%d], s%d offen offset:1024%s\ns_mov_b32 exec_hi, -1" % (rb + 4, rb + 7, V_ST, SRD_O, SRD_O + 3, S_ST, pol),
                  kind="v", need_l=[("hr", q, 1)], cost=12, after=12))
    return ops


def stamp(i):
    return [Op("s_memtime s[%d:%d]" % (S_STAMP + 2 * i, S_STAMP + 2 * i + 1))]


def generate(cfg):
    E = Emitter()
    E.filt = cfg.get("filt", [])
    E.age = cfg.get("age", 12)
    R = E.raw
    dbg = cfg.get("stamps", False)
    names = ["start"]
    ROW_ORDER = cfg.get("rows", [2, 0, 1, 3, 4, 5, 6, 7])

    probe = cfg.get("probe")

    def st(name):
        if not dbg:
            return []
        if probe and not name.startswith("@") and name not in ("Bt0", "mfma_end"):
            return []
        names.append(name)
        assert len(names) <= 18
        return stamp(len(names) - 1)

    E.lines.append("L_start:")
    if dbg:
        R("s_memtime s[%d:%d]" % (S_STAMP, S_STAMP + 1))
        R("s_memrealtime s[%d:%d]" % (S_STAMP + 36, S_STAMP + 37))
        R("s_load_dwordx2 s[56:57], s[0:1], 40")
    R("s_load_dwordx8 s[4:11], s[0:1], 0")
    R("s_cmp_ge_u32 s2, 256")
    R("s_cbranch_scc1 L_end")
    R("v_lshrrev_b32 v%d, 6, v0" % V_T0)
    R("v_and_b32 v0, 63, v0")
    R("v_readfirstlane_b32 s%d, v%d" % (S_WAVE, V_T0))
    R("s_mov_b32 s%d, %d" % (SRD_W + 2, 9 * TAPB))
    R("s_mov_b32 s%d, 0x20000" % (SRD_W + 3))
    R("s_and_b32 s%d, s%d, 1" % (S_H, S_WAVE))
    R("s_lshr_b32 s%d, s%d, 1" % (S_P, S_WAVE))
    R("s_mul_i32 s%d, s%d, 4608" % (S_W4608, S_WAVE))
    R("v_lshlrev_b32 v%d, 4, v0" % V_ST)
    R("s_lshl_b32 s%d, s%d, 5" % (S_T1, S_H))
    R("v_add_u32 v%d, s%d, v%d" % (V_T0, S_W4608, V_ST))
    R("v_xor_b32 v%d, s%d, v%d" % (V_W[0], S_T1, V_T0))
    R("v_and_b32 v%d, 32, v0" % V_T1)
    R("v_xor_b32 v%d, 32, v%d" % (V_W[2], V_W[0]))
    R("v_xor_b32 v%d, v%d, v%d" % (V_W[1], V_T1, V_W[0]))

    C = {}
    def chunk(name):
        C[name] = []
        return C[name].append
    A = chunk("x")
    A("s_and_b32 s%d, s2, 7" % S_TC)
    A("s_lshr_b32 s%d, s2, 3" % S_TR)
    A("s_mul_i32 s%d, s%d, %d" % (S_XB, S_TR, 12 * ROWB))
    A("s_mul_i32 s%d, s%d, %d" % (S_T0, S_TC, 48 * 192))
    A("s_add_u32 s%d, s%d, s%d" % (S_OBASE, S_XB, S_T0))
    A("s_sub_u32 s%d, s%d, %d" % (S_XB, S_OBASE, ROWB))
    A("s_mul_i32 s%d, s%d, %d" % (S_T0, S_P, 6 * ROWB))
    A("s_add_u32 s%d, s%d, s%d" % (S_XP, S_XB, S_T0))
    A("s_add_u32 s%d, s%d, s%d" % (S_OBASE, S_OBASE, S_T0))
    A("s_mul_i32 s%d, s%d, %d" % (S_RB, S_P, LROW))
    A("s_lshl_b32 s%d, s%d, 10" % (S_T0, S_H))
    A("s_add_u32 s%d, s%d, s%d" % (S_XM, S_RB, S_T0))
    A("s_mov_b32 s%d, %d" % (SRD_X + 2, XBYTES + 192))
    A("s_mov_b32 s%d, 0x20000" % (SRD_X + 3))
    A("s_lshl_b32 s%d, s%d, 6" % (S_T0, S_H))
    A("s_movk_i32 s%d, 1366" % S_T2)
    A("v_add_u32 v%d, s%d, v0" % (V_T0, S_T0))
    def xoff(A, jj):
        A("v_add_u32 v%d, %d, v%d" % (V_T1, ROW_START[jj], V_T0))
        A("v_mul_u32_u24 v%d, s%d, v%d" % (V_T2, S_T2, V_T1))
        A("v_lshrrev_b32 v%d, 15, v%d" % (V_T2, V_T2))
        A("v_and_b32 v%d, 2, v%d" % (V_T2, V_T2))
        A("v_xor_b32 v%d, v%d, v%d" % (V_T2, V_T2, V_T0))
        if ROW_M0[jj]:
            A("v_lshlrev_b32 v%d, 4, v%d" % (V_T2, V_T2))
            A("v_add_u32 v%d, %d, v%d" % (V_X[jj], ROW_M0[jj], V_T2))
        else:
            A("v_lshlrev_b32 v%d, 4, v%d" % (V_X[jj], V_T2))
    xoff(A, 0)
    A("s_or_b32 s%d, s%d, s%d" % (S_T0, S_TC, S_H))
    A("s_cmp_eq_u32 s%d, 0" % S_T0)
    A("s_cselect_b32 s%d, 12, 0" % S_T0)
    A("v_cmp_gt_u32 vcc, s%d, v0" % S_T0)
    A("v_mov_b32 v%d, %d" % (V_T6, HUGE))
    xoff(A, 1)
    A("v_cndmask_b32 v%d, v%d, v%d, vcc" % (V_X[0], V_X[0], V_T6))
    A = chunk("x2")
    xoff(A, 2); xoff(A, 3); xoff(A, 4)
    A("s_lshl_b32 s%d, s%d, 3" % (S_T0, S_H))
    A("s_or_b32 s%d, s%d, s%d" % (S_T0, S_T0, S_TC))
    A("s_cmp_eq_u32 s%d, 15" % S_T0)
    A("s_cselect_b32 s%d, 52, 64" % S_T0)
    A("v_cmp_le_u32 vcc, s%d, v0" % S_T0)
    A("s_or_b32 s%d, s%d, s%d" % (S_T0, S_TR, S_P))
    A("s_cmp_eq_u32 s%d, 0" % S_T0)
    A("s_cselect_b32 s%d, %d, s%d" % (S_X0, HUGE, S_XP))
    A("v_cndmask_b32 v%d, v%d, v%d, vcc" % (V_X[4], V_X[4], V_T6))
    A = chunk("bw")
    A("v_lshrrev_b32 v%d, 4, v0" % V_T7)
    A("s_mul_i32 s%d, s%d, 96" % (S_T0, S_H))
    A("v_lshlrev_b32 v%d, 3, v%d" % (V_T3, V_T7))
    A("s_lshl_b32 s%d, s%d, 8" % (S_BM, S_WAVE))
    A("s_add_u32 s%d, s%d, %d" % (S_BM, S_BM, BIAS_LDS))
    A("s_add_u32 s%d, s%d, s%d" % (S_T0, S_T0, S_BM))
    A("v_add_u32 v%d, s%d, v%d" % (V_T3, S_T0, V_T3))
    A("v_lshlrev_b32 v%d, 2, v0" % V_BO)
    A("s_mov_b32 s%d, 192" % (SRD_B + 2))
    A("s_mov_b32 s%d, 0x20000" % (SRD_B + 3))
    if cfg.get("pfmode", 0) == 0:
        A("s_lshl_b32 s%d, s%d, 2" % (S_T0, S_TR))
        A("s_add_u32 s%d, s%d, s%d" % (S_T0, S_T0, S_WAVE))
        A("s_mul_i32 s%d, s%d, %d" % (S_PFW, S_T0, 11 * 128))
        A("s_lshl_b32 s%d, s%d, 8" % (S_T0, S_T0))
        A("v_lshlrev_b32 v%d, 7, v0" % V_T4)
        A("v_add_u32 v%d, s%d, v%d" % (V_T5, S_T0, V_T4))
        A("s_lshl_b32 s%d, s%d, 12" % (S_T0, S_WAVE))
        A("s_add_u32 s%d, s%d, 4096-256-(L_pc-L_start)" % (S_T0, S_T0))
        A("v_cmp_gt_u32 vcc, 2, v0")
        A("v_add_u32 v%d, s%d, v%d" % (V_T8, S_T0, V_T4))
        A("s_nop 0")
        A("v_cndmask_b32 v%d, v%d, v%d, vcc" % (V_T5, V_T8, V_T5))
    else:
        tab = 0
        for i in range(8):
            ta = 1 + (i + 1) % 8
            dx, dy = divmod(ta, 3)
            tab |= (dy * 3 + dx) << (4 * i)
        A("s_and_b32 s%d, s%d, 7" % (S_T0, S_TR))
        A("s_lshl_b32 s%d, s%d, 2" % (S_T0, S_T0))
        A("s_lshr_b32 s%d, 0x%x, s%d" % (S_PFW, tab, S_T0))
        A("s_and_b32 s%d, s%d, 15" % (S_PFW, S_PFW))
        A("s_mul_i32 s%d, s%d, %d" % (S_PFW, S_PFW, TAPB))
        A("s_add_u32 s%d, s%d, s%d" % (S_PFW, S_PFW, S_W4608))
        A("v_lshlrev_b32 v%d, 7, v0" % V_T4)
        A("s_add_u32 s%d, s%d, s%d" % (S_T0, S_T0, S_WAVE))
        A("s_mul_i32 s%d, s%d, 640" % (S_T0, S_T0))
        A("v_add_u32 v%d, s%d, v%d" % (V_T5, S_T0, V_T4))
    A("v_min_u32 v%d, L_end-L_pc, v%d" % (V_T5, V_T5))
    A("s_getpc_b64 s[%d:%d]" % (S_PC, S_PC + 1))
    A("L_pc:")
    A = chunk("tr")
    A("s_movk_i32 s%d, 192" % S_T1)
    A("v_bfe_u32 v%d, v0, 2, 2" % V_T8)
    A("v_lshl_add_u32 v%d, v%d, 3, v%d" % (V_T8, V_T7, V_T8))
    A("v_mul_u32_u24 v%d, s%d, v%d" % (V_T8, S_T1, V_T8))
    A("v_and_b32 v%d, 1, v0" % V_T9)
    A("v_lshl_add_u32 v%d, v%d, 3, v%d" % (V_T8, V_T9, V_T8))
    A("v_bfe_u32 v%d, v0, 1, 1" % V_T9)
    A("s_mul_i32 s%d, s%d, 6" % (S_T0, S_H))
    A("v_add_u32 v%d, s%d, v%d" % (V_T9, S_T0, V_T9))
    A("v_bfe_u32 v%d, v0, 4, 1" % V_T10)
    A("v_lshlrev_b32 v%d, 1, v%d" % (V_T10, V_T10))
    for par in range(2):
        A("v_add_u32 v%d, %d, v%d" % (V_T11, 2 * par, V_T9))
        A("v_xor_b32 v%d, v%d, v%d" % (V_T11, V_T11, V_T10))
        A("v_lshl_add_u32 v%d, v%d, 4, v%d" % (V_T11, V_T11, V_T8))
        A("v_add_u32 v%d, %d, v%d" % (V_TR[par], TR_REG[0], V_T11))
    A = chunk("fb")
    A("s_movk_i32 s%d, 192" % S_T1)
    A("v_and_b32 v%d, 15, v0" % V_T8)
    for dx in range(3):
        A("v_add_u32 v%d, %d, v%d" % (V_T9, dx, V_T8))
        A("v_lshrrev_b32 v%d, 1, v%d" % (V_T10, V_T9))
        A("v_and_b32 v%d, 2, v%d" % (V_T10, V_T10))
        A("v_xor_b32 v%d, v%d, v%d" % (V_T10, V_T10, V_T7))
        A("v_lshlrev_b32 v%d, 4, v%d" % (V_T10, V_T10))
        A("v_mad_u32_u24 v%d, v%d, s%d, v%d" % (V_T10, V_T9, S_T1, V_T10))
        A("v_add_u32 v%d, s%d, v%d" % (V_B[dx], S_RB, V_T10))
    A = chunk("st")
    A("s_mov_b32 s%d, s%d" % (SRD_O, S_O))
    A("s_mov_b32 s%d, s%d" % (SRD_O + 1, S_O + 1))
    A("s_mov_b32 s%d, %d" % (SRD_O + 2, XBYTES))
    A("s_mov_b32 s%d, 0x20000" % (SRD_O + 3))
    A("s_movk_i32 s%d, 192" % S_T1)
    A("v_and_b32 v%d, 15, v0" % V_T8)
    A("s_mul_i32 s%d, s%d, 6144" % (S_T2, S_P))
    A("v_mul_u32_u24 v%d, s%d, v%d" % (V_T9, S_T1, V_T8))
    A("v_add_u32 v%d, s%d, v%d" % (V_T9, S_T2, V_T9))
    A("v_bfe_u32 v%d, v0, 4, 1" % V_T10)
    A("v_lshl_add_u32 v%d, v%d, 3, v%d" % (V_T9, V_T10, V_T9))
    A("v_bfe_u32 v%d, v0, 1, 2" % V_T10)
    A("s_mul_i32 s%d, s%d, 6" % (S_T0, S_H))
    A("v_lshrrev_b32 v%d, 5, v0" % V_T8)
    A("v_add_u32 v%d, s%d, v%d" % (V_T8, S_T0, V_T8))
    for par in range(2):
        A("v_add_u32 v%d, %d, v%d" % (V_T11, 2 * par, V_T8))
        A("v_xor_b32 v%d, v%d, v%d" % (V_T11, V_T11, V_T10))
        A("v_lshl_add_u32 v%d, v%d, 4, v%d" % (V_SW[par], V_T11, V_T9))
    A("s_mul_i32 s%d, s%d, 3072" % (S_T0, S_WAVE))
    A("s_movk_i32 s%d, 2731" % S_T2)
    for i in range(3):
        A("v_add_u32 v%d, %d, v0" % (V_T8, 64 * i))
        A("v_mul_u32_u24 v%d, s%d, v%d" % (V_T11, S_T2, V_T8))
        A("v_bfe_u32 v%d, v%d, 16, 2" % (V_T11, V_T11))
        A("v_xor_b32 v%d, v%d, v%d" % (V_T11, V_T11, V_T8))
        A("v_lshlrev_b32 v%d, 4, v%d" % (V_T11, V_T11))
        A("v_add_u32 v%d, s%d, v%d" % (V_SR[i], S_T0, V_T11))

    emitted = set()
    def issue(toks):
        for tok in toks:
            if tok.startswith("#"):
                if tok == "#st": assert "K" in emitted
                emitted.add(tok[1:])
                for ln in C[tok[1:]]:
                    if ln.endswith(":"): E.lines.append(ln)
                    else: R(ln)
            elif tok == "K":
                R("s_waitcnt lgkmcnt(0)")
                for op in st("karg"): E.emit(op)
                R("s_mov_b32 s%d, s%d" % (SRD_B, S_B))
                R("s_mov_b32 s%d, s%d" % (SRD_B + 1, S_B + 1))
                R("s_mov_b32 s%d, s%d" % (SRD_W, S_W))
                R("s_mov_b32 s%d, s%d" % (SRD_W + 1, S_W + 1))
                R("s_sub_u32 s%d, s%d, 192" % (SRD_X, S_X))
                R("s_subb_u32 s%d, s%d, 0" % (SRD_X + 1, S_X + 1))
                emitted.add("K")
            elif tok == "b":
                assert "bw" in emitted and "K" in emitted
                R("s_mov_b32 m0, s%d" % S_BM)
                R("s_nop 0")
                E.emit(Op("buffer_load_dword v%d, s[%d:%d], 0 offen lds" % (V_BO, SRD_B, SRD_B + 3), kind="v", tag=("bias",)))
            elif tok == "w":
                assert "bw" in emitted and "K" in emitted
                if cfg.get("pfmode", 0) == 0:
                    R("s_mov_b64 exec, 0x7ff")
                else:
                    R("s_mov_b32 exec_hi, 15")
                E.emit(Op("buffer_load_dword v%d, v%d, s[%d:%d], s%d offen" % (V_PF, V_T4, SRD_W, SRD_W + 3, S_PFW), kind="v"))
                R("s_mov_b64 exec, -1")
            elif tok == "c":
                assert "bw" in emitted
                R("s_mov_b64 exec, %d" % (15 if cfg.get("pfmode", 0) == 0 else 31))
                E.emit(Op("global_load_dword v%d, v%d, s[%d:%d]" % (V_PF + 1, V_T5, S_PC, S_PC + 1), kind="v", tag=("pf",)))
                R("s_mov_b64 exec, -1")
            elif tok.startswith("S"):
                for op in st(tok[1:]): E.emit(op)
            else:
                assert "K" in emitted
                if tok[0] == "p":
                    assert "x" in emitted and ("x2" in emitted or tok in ("p2.0", "p2.1"))
                if "." in tok:
                    ops = piece_ops(tok, cfg)
                else:
                    ops = seq_with_m0_nop(tap_load_ops(int(tok[1]), cfg) if tok[0] == "t" else row_load_ops(int(tok[1]), cfg))
                for op in ops:
                    E.emit(op)

    issue(cfg.get("pro", ["#x", "#bw", "c", "K", "b", "t0", "p2.0", "#x2", "p2.1", "p2.2", "p2.3", "p2.4", "w", "#tr", "#fb", "#st", "Siss1", "t1", "Siss2"]))
    assert emitted >= {"x", "x2", "bw", "tr", "fb", "st", "K"}

    frags = []; fidx = {}
    mf = []
    step_start = []

    def fr(k, r, ct, dx, kc):
        key = (k, r, ct, dx, kc)
        if key not in fidx:
            fidx[key] = len(frags); frags.append(key)
        return fidx[key]

    if cfg.get("endmode", 1) == 0:
        STEPS = [None, [(0, [0])], [(1, [1, 0])], [(3, [2, 1, 0])], [(4, [2, 1, 0])], [(5, [2, 1, 0])], [(6, [2, 1])], [(7, [2])]]
    else:
        STEPS = [None, [(0, [0])], [(1, [1, 0])], [(3, [2, 1, 0])], [(4, [2, 1, 0])], [(5, [2, 1])], [(6, [2])], [(5, [0]), (6, [1]), (7, [2])]]
    for k, parts in enumerate(STEPS):
        step_start.append(len(mf))
        if k == 0:
            r = 2
            units = [(0, dy, ct) for (dy, ct) in cfg.get("units0", [(0, 0), (0, 1), (0, 2), (1, 0), (1, 1), (1, 2), (2, 0), (2, 1), (2, 2)])]
            units += [(dx, dy, ct) for dx in (1, 2) for dy in range(3) for ct in range(3)]
            for (dx, dy, ct) in units:
                for t in range(3):
                    for kc in range(3):
                        mf.append((fr(k, r, ct, dx, kc), dy, t))
        else:
            for ct in range(3):
                for (r, dys) in parts:
                    for dy in dys:
                        for t in range(3):
                            for dx in range(3):
                                for kc in range(3):
                                    mf.append((fr(k, r, ct, dx, kc), dy, t))
    NM = len(mf)
    assert NM == 1458
    step_start.append(NM)
    first_use = {}; last_use = {}
    last_of = {}; first_of = {}; first_flags = []
    for i, (fi, dy, t) in enumerate(mf):
        first_use.setdefault(fi, i); last_use[fi] = i
        k, r, ct, dx, kc = frags[fi]
        key = (r - dy, ct, t)
        last_of[key] = i
        first_flags.append(key not in first_of)
        first_of.setdefault(key, i)

    CAP = 12
    side = [[] for _ in range(NM + 2)]
    used = [0] * (NM + 3)

    def force(pos, ops):
        for op in ops:
            side[pos].append(op); used[pos] += op.cost

    def sched(ops, start, step=0, cap=CAP, vstep=None, dry=False):
        p = start; first = None
        tmp = {}
        for op in ops:
            while p <= NM and used[p] + tmp.get(p, 0) + op.cost > cap:
                p += 1
            assert p <= NM, op.text
            if dry:
                tmp[p] = tmp.get(p, 0) + op.cost
                tmp[p + 1] = tmp.get(p + 1, 0) + op.after
            else:
                side[p].append(op); used[p] += op.cost
                used[p + 1] += op.after
            if first is None: first = p
            last = p
            p += vstep if (vstep is not None and op.kind == "v") else step
        return first, last

    dlt = cfg.get("tdelta", 2)
    bt = {i: 27 * (i - 1) + dlt for i in range(1, 9)}
    bt[1] = 26; bt[2] = 32
    for kk, vv in cfg.get("bt", {}).items():
        bt[int(kk)] = vv
    bars = []

    def barrier(pos, vt, name=None, nosync=False):
        op = Op("s_barrier", kind="b", need_v=vt, cost=4)
        op.nosync = nosync
        side[pos].insert(0, op); used[pos] += 4
        if not nosync:
            bars.append(pos)
        if name and dbg and not probe:
            side[pos].insert(1, st(name)[0])
        return op

    for i in range(1, 9):
        barrier(bt[i], [("tap", i)], "Bt%d" % i if i in (1, 2, 3, 8) else None, nosync=(i <= 2))
    ba1, ba2 = cfg.get("ba", [8, 17])
    barrier(ba1, [("pairp", 2, 2)], "A1", nosync=True)
    barrier(ba2, [("pair", 2)], "A2", nosync=True)

    WLAG = 9
    beta = {}
    for u in range(8):
        q = 2 * u + 1
        o, ct = divmod(q, 3)
        beta[u] = last_of[(o, ct, 2)] + WLAG + (cfg.get("beta_lag", 12) if u < 7 else 8)
    q16 = last_of[(5, 1, 2)] + WLAG + 8
    pair_of_row = {0: 0, 1: 1, 3: 3, 4: 4, 5: 5, 6: 6}
    LEAD = cfg.get("lead", 40)
    row_bar = {}
    beta_ops = {}
    for u in range(8):
        beta_ops[u] = barrier(beta[u], [], "b%d" % u if u in (0, 4) else None)
    barrier(q16, [], None)
    for k in range(1, 8):
        r = ROW_ORDER[k]
        want = step_start[k] - (cfg.get("lead1", 16) if k <= 2 else LEAD)
        if r not in pair_of_row:
            row_bar[k] = want
            continue
        cands = [u for u in range(8) if want - cfg.get("bwin", 130) <= beta[u] <= want + 15]
        if cands:
            u = cands[-1]
            beta_ops[u].need_v.append(("pair", pair_of_row[r]))
            row_bar[k] = max(beta[u], want)
        else:
            if k == 1:
                want = max(want, bt[8] + 22)
            barrier(want, [("pair", pair_of_row[r])], "B%d" % k if k == 1 else None)
            row_bar[k] = want
    bars.sort()
    tap_free = row_bar[1]

    pool = [(V_FR + 4 * i, 0) for i in range(12)]
    extra = []
    w_pos = {}
    tail_w = []
    for q in range(18):
        o, ct = divmod(q, 3)
        for t in range(3):
            p0 = last_of[(o, ct, t)] + WLAG
            if q // 2 >= 2:
                p0 = max(p0, beta[q // 2 - 1] + 1)
            if p0 + 3 > NM:
                tail_w.append((o, ct, t)); continue
            f, l = sched(stage_write_ops(o, ct, t), p0)
            w_pos[(q, t)] = (f, l)
            nxt = [first_of[(o2, ct, t)] for o2 in range(o + 1, 6) if ACC_SET[o2] == ACC_SET[o]]
            if nxt:
                assert l < min(nxt), (q, t, l, nxt)
    for u in range(8):
        assert w_pos[(2 * u + 1, 2)][1] < beta[u], (u, w_pos[(2 * u + 1, 2)], beta[u])
        if u >= 2:
            assert w_pos[(2 * u, 0)][1] > beta[u - 1], (u,)
    assert w_pos[(16, 2)][1] < q16 and w_pos[(16, 0)][1] > beta[7]
    assert w_pos[(0, 0)][1] > tap_free
    if cfg.get("extra_bufs", True):
        for ct in (1, 2):
            for t in range(3):
                pool.append((acc(0, ct, t), w_pos[(ct, t)][1] + 2))

    dma = cfg.get("dma", [(5, "t2.2"), (12, "t2.3"), (14, "t2.4"), (18, "t3"), (34, "t4"), (50, "t5"), (66, "t6"), (84, "t7"), (100, "t8"), (116, "p0"),
                          (165, "p1"), (250, "p3"), (330, "p4"), (500, "p5"), (740, "p6")])
    prev_end = -1
    dma_start = {}
    for (p, tok) in dma:
        n = int(tok[1])
        p = max(p, prev_end + 1)
        if "." in tok:
            ops = [op for op in piece_ops(tok, cfg) if not op.text.startswith("s_nop")]
            f, prev_end = sched(ops, p)
        elif tok[0] == "t":
            dma_start[tok] = p
            f, prev_end = sched(tap_load_ops(n, cfg), p, vstep=cfg.get('vstep', 3))
            assert prev_end < bt[n], (tok, prev_end, bt[n])
        else:
            if n >= 3:
                assert p > tap_free
            dma_start[tok] = p
            f, prev_end = sched(row_load_ops(n, cfg), p, vstep=cfg.get('vstep', 3))
        if dbg or cfg.get("verbose"):
            print("dma", tok, f, prev_end, file=sys.stderr)

    fbuf = {}
    PFD = cfg.get("pfd", 60)
    prev = 0
    cur_bank = (0, LROW)
    pre_reads = []
    for fi, (k, r, ct, dx, kc) in enumerate(frags):
        pool.sort(key=lambda x: x[1])
        reg, free = pool.pop(0)
        fbuf[fi] = reg
        pool.append((reg, last_use[fi] + 1))
        a, b = read_base(r)
        ops = []
        rel = a - cur_bank[0]
        if not (b - a == cur_bank[1] - cur_bank[0] and 0 <= rel <= 65535 - 6400):
            d0 = (a - cur_bank[0]) & 0xFFFFFFFF
            d1 = ((b - cur_bank[1]) - (a - cur_bank[0])) & 0xFFFFFFFF
            if d1 == 0:
                for d in range(3):
                    ops.append(Op("v_add_u32 v%d, 0x%x, v%d" % (V_B[d], d0, V_B[d])))
            else:
                ops.append(Op("s_mul_i32 s%d, s%d, 0x%x" % (S_RB, S_P, d1)))
                ops.append(Op("s_add_u32 s%d, s%d, 0x%x" % (S_RB, S_RB, d0)))
                for d in range(3):
                    ops.append(Op("v_add_u32 v%d, s%d, v%d" % (V_B[d], S_RB, V_B[d])))
            cur_bank = (a, b); rel = 0
        rd = Op("ds_read_b128 v[%d:%d], v%d offset:%d" % (reg, reg + 3, V_B[dx], rel + ct * 3072 + kc * 64), kind="l", tag=("f", fi), cost=8)
        if fi < 3:
            pre_reads.append(rd); continue
        p0 = max(free, first_use[fi] - PFD, prev, row_bar.get(k, 0))
        if k == 0:
            p0 = max(p0, ba1 if fi < 6 else ba2)
        if ops:
            f, l = sched(ops, max(prev, p0 - 6))
            p0 = max(p0, l)
        f, l = sched([rd], p0, cap=(28 if fi < 9 else CAP))
        assert l <= first_use[fi], (fi, l, first_use[fi])
        prev = l
        if first_use[fi] - l < cfg.get("warn_dist", 10):
            print("short prefetch distance", fi, frags[fi], first_use[fi] - l, file=sys.stderr)

    tr_end = {0: -1}
    tap_first = {}
    for i, (fi, dy, t) in enumerate(mf):
        if frags[fi][0] == 0:
            tap_first.setdefault(ta_of(dy, frags[fi][3]), i)
    for i in range(1, 9):
        ops = tr_ops(i)
        dead = tap_first[i] - cfg.get("trdead", 2)
        if bt[i] >= dead - 2:
            force(bt[i], ops); tr_end[i] = bt[i]
            continue
        n_over = 0
        while True:
            save_used = list(used); save_side = [list(x) for x in side]
            f, l = (bt[i], bt[i])
            if n_over:
                f, l = sched(ops[:n_over], bt[i], cap=16)
            if n_over < len(ops):
                f2, l = sched(ops[n_over:], l)
            if l <= dead or n_over >= len(ops):
                break
            used[:] = save_used
            for a in range(len(side)): side[a][:] = save_side[a]
            n_over += 2
        tr_end[i] = l
        assert l < tap_first[i] + 3
        if i < 8: assert l < bt[i + 1] or i + 1 <= 2 or True
        if dbg or cfg.get("verbose"):
            print("tr", i, bt[i], l, "over", n_over, file=sys.stderr)
    for i in range(1, 8):
        assert tr_end[i] <= bt[i + 1] or TR_REG[i] == TR_REG[i + 1], i
    def freed(prev_tap, p):
        return any(tr_end[prev_tap] < b < p for b in bars)
    for n, pv in TAP_PREV.items():
        assert freed(pv, dma_start["t%d" % n]), n
    assert freed(6, dma_start["p1"])
    assert tr_end[8] < tap_free

    late = [Op("s_mul_i32 s%d, s%d, 3072" % (S_OA, S_H)), Op("s_add_u32 s%d, s%d, s%d" % (S_OA, S_OA, S_OBASE)),
            Op("s_mul_i32 s%d, s%d, %d" % (S_OB, S_H, ROWB - 6144)), Op("s_add_u32 s%d, s%d, s%d" % (S_OB, S_OB, S_OBASE)),
            Op("s_mul_i32 s%d, s%d, 1536" % (S_OH, S_H)), Op("s_add_u32 s%d, s%d, s%d" % (S_OH, S_OH, S_OBASE))]
    late += [Op("s_mul_i32 s%d, s%d, 96" % (S_T0, S_H)), Op("s_movk_i32 s%d, 2731" % S_T2), Op("s_mul_i32 s%d, s%d, 6144" % (S_T1, S_P))]
    for i in range(2):
        if i:
            late.append(Op("s_add_u32 s%d, s%d, 64" % (S_T0, S_T0)))
        late += [Op("v_add_u32 v%d, s%d, v0" % (V_TR[0], S_T0)),
                 Op("v_mul_u32_u24 v%d, s%d, v%d" % (V_TR[1], S_T2, V_TR[0])),
                 Op("v_bfe_u32 v%d, v%d, 16, 2" % (V_TR[1], V_TR[1])),
                 Op("v_xor_b32 v%d, v%d, v%d" % (V_TR[1], V_TR[1], V_TR[0])),
                 Op("v_lshlrev_b32 v%d, 4, v%d" % (V_TR[1], V_TR[1])),
                 Op("v_add_u32 v%d, s%d, v%d" % (V_SH[i], S_T1, V_TR[1]))]
    f, l = sched(late, 260, step=1)
    assert l < beta[0]

    for u in range(8):
        f, l = sched(pair_read_ops(u), beta[u] + 1)
        f2, l2 = sched(pair_store_ops(u, cfg), l + cfg.get("rgap", 8), step=cfg.get("ststep", 4))
        nb = beta[u + 1] if u < 7 else q16
        assert l2 < nb, (u, l2, nb)
    f, l = sched(half_read_ops(16, V_RB), q16 + 1)
    tail16 = True
    if l + 6 + 4 <= NM:
        sched(half_store_ops(16, V_RB, cfg), l + 6)
        tail16 = False

    if probe:
        for i in range(15):
            pos = probe[0] + i * probe[1]
            side[pos].append(Op("L_probe%d:" % pos))
            side[pos] += st("@%d" % pos)
    def touch():
        if cfg.get("pads"):
            R("s_mov_b64 vcc, -1")
            for i in range(len(cfg["pads"])):
                R("s_cmp_eq_u32 s%d, %d" % (S_WAVE, i % 4))
                R("s_cbranch_scc1 L_pad%d" % i)
            E.lines.append("L_padret:")
            R("s_mov_b64 vcc, 0")
    if cfg.get("padpos", "pre") == "pre":
        touch()
    E.emit(Op("s_barrier", kind="b", need_v=[("tap", 0)]))
    for op in st("Ba"): E.emit(op)
    for op in tr_ops(0):
        E.emit(op)
    issue(cfg.get("second", ["t2.0", "t2.1"]))
    for t in range(3):
        b = V_BIAS + 4 * t + 2
        E.emit(Op("ds_read_b64 v[%d:%d], v%d offset:%d" % (b, b + 1, V_T3, 32 * t), kind="l", tag=("br", t), need_v=[("bias",)]))
    for t in range(3):
        b = V_BIAS + 4 * t
        E.emit(Op("v_lshlrev_b32 v%d, 16, v%d" % (b, b + 2), need_l=[("br", t)]))
        E.emit(Op("v_and_b32 v%d, 0xffff0000, v%d" % (b + 1, b + 2)))
        E.emit(Op("v_lshlrev_b32 v%d, 16, v%d" % (b + 2, b + 3)))
        E.emit(Op("v_and_b32 v%d, 0xffff0000, v%d" % (b + 3, b + 3)))
    issue(cfg.get("third", []))
    if cfg.get("padpos", "pre") == "post":
        touch()
    op = Op("s_barrier", kind="b", need_v=[("pairp", 2, 1)]); op.nosync = True
    E.emit(op)
    for op in st("Bt0"): E.emit(op)
    if dbg: R("s_memrealtime s[50:51]")
    E.pos = 0
    for op in pre_reads:
        E.emit(op)

    pads = cfg.get("pads", [])
    for i, (fi, dy, t) in enumerate(mf):
        E.pos = i
        if cfg.get("labels"):
            E.lines.append("L_m%d:" % i)
        if i in pads:
            E.lines.append("L_pad%d:" % pads.index(i))
            R("s_cbranch_vccnz L_padret")
        for op in side[i]:
            E.emit(op)
        k, r, ct, dx, kc = frags[fi]
        o = r - dy
        d = acc(o, ct, t)
        c, rg = wreg(dy, dx, kc, t)
        fb = fbuf[fi]
        srcc = (V_BIAS + 4 * t) if first_flags[i] else d
        E.emit(Op("v_mfma_f32_16x16x32_bf16 v[%d:%d], %s[%d:%d], v[%d:%d], v[%d:%d]" % (d, d + 3, c, rg, rg + 3, fb, fb + 3, srcc, srcc + 3),
                  kind="m", need_l=[("f", fi), ("w", dy, dx, kc, t, 1)]))
    for op in side[NM]:
        E.emit(op)
    for op in st("mfma_end"): E.emit(op)
    if dbg: R("s_memrealtime s[58:59]")
    if tail16:
        for op in half_store_ops(16, V_RB, cfg):
            E.emit(op)
        R("s_nop 3")
    else:
        R("s_nop 7")
    for (o, ct, t) in tail_w:
        for op in stage_write_ops(o, ct, t):
            E.emit(op)
    E.emit(Op("s_barrier", kind="b"))
    rb2 = acc(0, 1, 0)
    for op in half_read_ops(17, rb2) + half_store_ops(17, rb2, cfg):
        E.emit(op)
    if dbg:
        for op in st("st_iss"): E.emit(op)
        R("s_waitcnt vmcnt(0)")
        for op in st("st_done"): E.emit(op)
        R("s_memrealtime s[%d:%d]" % (S_STAMP + 38, S_STAMP + 39))
        R("s_waitcnt lgkmcnt(0)")
        R("s_mov_b32 s52, s56"); R("s_mov_b32 s53, s57"); R("s_mov_b32 s54, 0x100000"); R("s_mov_b32 s55, 0x20000")
        R("s_lshl_b32 s%d, s2, 2" % S_T0)
        R("s_add_u32 s%d, s%d, s%d" % (S_T0, S_T0, S_WAVE))
        R("s_mul_i32 s%d, s%d, 256" % (S_T0, S_T0))
        for j in range(40):
            R("v_mov_b32 v%d, s%d" % (64 + j, S_STAMP + j))
        R("v_mov_b32 v104, s50"); R("v_mov_b32 v105, s51"); R("v_mov_b32 v106, s58"); R("v_mov_b32 v107, s59")
        R("v_mov_b32 v1, 0")
        R("s_mov_b64 exec, 1")
        for j in range(11):
            R("buffer_store_dwordx4 v[%d:%d], v1, s[52:55], s%d offen offset:%d" % (64 + 4 * j, 67 + 4 * j, S_T0, 16 * j))
    E.lines.append("L_end:")
    R("s_endpgm")
    info = dict(names=names, bars=bars, bs=dict(beta=beta, row_bar=row_bar, q16=q16), step_start=step_start, tail_w=tail_w, tail16=tail16)
    return HEADER + "\n".join(E.lines) + "\n" + FOOTER, info


def with_pads(cfg):
    import subprocess, tempfile, os, re
    npads = 4
    c = dict(cfg, labels=True, pads=[100000 + i for i in range(npads)])
    c["pads"] = [0, 1, 2, 3]
    for it in range(3):
        txt, info = generate(c)
        with tempfile.TemporaryDirectory() as d:
            open(d + "/a.s", "w").write(txt)
            subprocess.run(["clang", "-x", "assembler", "-target", "amdgcn-amd-amdhsa", "-mcpu=gfx950", "-c", d + "/a.s", "-o", d + "/a.o"], check=True)
            out = subprocess.run(["llvm-objdump", "-t", d + "/a.o"], capture_output=True, text=True).stdout
        addr = {}
        for ln in out.splitlines():
            m = re.match(r"([0-9a-f]+) .* L_m(\d+)$", ln)
            if m: addr[int(m.group(2))] = int(m.group(1), 16)
        new = []
        for k in range(1, npads + 1):
            cand = [i for i in sorted(addr) if addr[i] >= 4096 * k]
            new.append(cand[0])
        if new == c["pads"]:
            break
        c["pads"] = new
    print("pads", [(i, hex(addr[i])) for i in c["pads"]], file=sys.stderr)
    return dict(cfg, pads=c["pads"])


if __name__ == "__main__":
    import json
    out = sys.argv[1]
    cfg = json.loads(sys.argv[2]) if len(sys.argv) > 2 else {}
    if cfg.get("autopad", True):
        cfg = with_pads(cfg)
    txt, info = generate(cfg)
    open(out, "w").write(txt)
    open(out + ".info", "w").write(json.dumps(info))
    print(info)
```

```python
import sys

KN = "standalone__standard_2d_1d_3d_conv__vision_kernel"
XBYTES = 384 * 384 * 192
ROWB = 384 * 192
TAPB = 96 * 192
LROW = 9600
HUGE = 0x40000000

HEADER = """; Kernarg layout for this problem (48 bytes, ptrs only, base s[0:1]):
;   offset   0: d_in[0] x  shape=(1, 384, 384, 96) dtype=bfloat16 strides=(28311552, 73728, 192, 2) contiguous=True
;   offset   8: d_in[1] w  shape=(3, 3, 96, 96) dtype=bfloat16 strides=(55296, 18432, 192, 2) contiguous=True
;   offset  16: d_in[2] b  shape=(96,) dtype=bfloat16 strides=(2,) contiguous=True
;   offset  24: d_out     shape=(1, 384, 384, 96) dtype=bfloat16 (2 bytes/elem)
;   offset  32: d_debug   256 bytes
;   offset  40: d_ws      268435456 bytes workspace
; Generated by tools/gen4.py (own generator script).
; @launch grid=(256,1,1) block=(256,1,1) lds=163840
.amdgcn_target "amdgcn-amd-amdhsa--gfx950"
.text
.globl %s
.p2align 12
.p2align 8
.type %s,@function
%s:
""" % (KN, KN, KN)

FOOTER = """.section .rodata,"a"
.p2align 6
.amdhsa_kernel %s
  .amdhsa_next_free_vgpr 512
  .amdhsa_next_free_sgpr 102
  .amdhsa_accum_offset 256
  .amdhsa_group_segment_fixed_size 0
  .amdhsa_kernarg_size 48
  .amdhsa_float_denorm_mode_32 3
  .amdhsa_user_sgpr_count 2
  .amdhsa_user_sgpr_kernarg_segment_ptr 1
  .amdhsa_system_sgpr_workgroup_id_x 1
.end_amdhsa_kernel
""" % KN

S_X, S_W, S_B, S_O = 4, 6, 8, 10
SRD_X, SRD_W, SRD_B, SRD_O = 12, 16, 20, 24
S_WAVE, S_H, S_P = 28, 29, 30
S_XP, S_XB = 31, 32
S_XM, S_W4608 = 33, 34
S_OBASE = 35
S_T0, S_T1, S_T2 = 36, 37, 38
S_X0 = 39
S_RB = 40
S_TC, S_TR = 41, 42
S_ST = 43
S_XS, S_WS = 46, 47
S_PC = 48
S_OA, S_OB = 20, 21
S_OH = 22
S_PFW = 44
S_BM = 45
BIAS_LDS = 153600
S_STAMP = 60

V_B = [1, 2, 3]
V_X = [4, 5, 6, 7, 8]
V_W = [9, 10, 11]
V_TR = [12, 13]
V_SW = [14, 15]
V_SR = [16, 17, 18]
V_ST = 19
V_SH = [9, 10]
V_BIAS = 20
V_FR = 32
V_WV = 80
V_ACC = 148
V_T0, V_T1, V_T2, V_T3, V_T4, V_T5, V_T6, V_T7, V_T8, V_T9, V_T10, V_T11 = range(244, 256)
V_BO = 243
V_PF = 146

PAIR_BASE = {2: 0, 1: 19200, 0: 38400, 3: 76800, 4: 96000, 5: 115200, 6: 134400}
TS = [57600 + TAPB * i for i in range(5)]
TAP_BASE = [19200, TS[0], TS[1], TS[2], TS[3], TS[4], 19200, TS[0], TS[1]]
TAP_PREV = {6: 0, 7: 1, 8: 2}
TR_REG = [19200, 19200, TS[1], TS[1], TS[1], TS[4], 19200, 19200, TS[1]]
STG_BASE = [0, 57600]
ACC_SET = {0: 0, 1: 1, 2: 2, 3: 1, 4: 2, 5: 1}


def ta_of(dy, dx):
    return dx * 3 + dy


def wreg(dy, dx, kc, t):
    f = (ta_of(dy, dx) * 3 + kc) * 3 + t
    if f < 64:
        return "a", 4 * f
    return "v", V_WV + 4 * (f - 64)


def acc(o, ct, t):
    return V_ACC + ((ACC_SET[o] * 3 + ct) * 3 + t) * 4


V_RB = acc(0, 0, 0)


class Op:
    def __init__(self, text, kind="p", tag=None, need_l=(), need_v=(), sync=False, cost=4, after=0):
        self.text = text
        self.kind = kind
        self.tag = tag
        self.need_l = list(need_l)
        self.need_v = list(need_v)
        self.sync = sync
        self.cost = cost
        self.after = after
        self.nosync = False


class Emitter:
    def __init__(self):
        self.lines = []
        self.l_seq = 0; self.l_idx = {}; self.l_done = 0
        self.v_seq = 0; self.v_idx = {}; self.v_done = 0
        self.last_sync = 0
        self.filt = []
        self.pos = -1000
        self.l_pos = [0]
        self.age = 12

    def raw(self, s):
        self.lines.append("    " + s)

    def emit(self, op):
        wl = None; wv = None
        ks = [self.l_idx[t] for t in op.need_l]
        if op.kind == "b" and not op.nosync:
            ks.append(self.last_sync)
        for k in ks:
            if k > self.l_done:
                while k < self.l_seq and self.l_pos[k + 1] <= self.pos - self.age:
                    k += 1
                n = min(self.l_seq - k, 14)
                wl = n if wl is None else min(wl, n)
        for t in op.need_v:
            k = self.v_idx[t]
            if k > self.v_done:
                n = min(self.v_seq - k, 62)
                wv = n if wv is None else min(wv, n)
        if wl is not None or wv is not None:
            s = "s_waitcnt"
            if wv is not None:
                s += " vmcnt(%d)" % wv
                self.v_done = max(self.v_done, self.v_seq - wv)
            if wl is not None:
                s += " lgkmcnt(%d)" % wl
                self.l_done = max(self.l_done, self.l_seq - wl)
            self.raw(s)
        if op.text:
            if any(op.text.startswith(x) for x in self.filt):
                if op.kind == "l" and op.tag is not None: self.l_idx[op.tag] = 0
                if op.kind == "v" and op.tag is not None: self.v_idx[op.tag] = 0
                return
            for ln in op.text.split("\n"):
                self.raw(ln)
        if op.kind == "l":
            self.l_seq += 1
            self.l_pos.append(self.pos)
            if op.tag is not None:
                self.l_idx[op.tag] = self.l_seq
            if op.sync:
                self.last_sync = self.l_seq
        elif op.kind == "v":
            self.v_seq += 1
            if op.tag is not None:
                self.v_idx[op.tag] = self.v_seq


ROW_START = (0, 128, 256, 384, 472)
ROW_IMM = (0, 2048, 0, 2048, 3456)
ROW_M0 = (0, 0, 4096, 4096, 4096)


def row_load_ops(n, cfg):
    ops = []
    pol = cfg.get("xpol", " nt")
    if n == 0:
        so = S_X0
    elif n <= 5:
        ops.append(Op("s_add_u32 s%d, s%d, %d" % (S_XS, S_XP, n * ROWB)))
        so = S_XS
    else:
        ops.append(Op("s_mul_i32 s%d, s%d, %d" % (S_XS, S_P, ROWB)))
        ops.append(Op("s_sub_u32 s%d, s%d, s%d" % (S_XS, S_XB, S_XS)))
        ops.append(Op("s_add_u32 s%d, s%d, %d" % (S_XS, S_XS, 13 * ROWB)))
        so = S_XS
    for jj in range(5):
        if jj in (0, 2):
            ops.append(Op("s_add_u32 m0, s%d, %d" % (S_XM, PAIR_BASE[n] + ROW_M0[jj])))
        ops.append(Op("buffer_load_dwordx4 v%d, s[%d:%d], s%d offen offset:%d%s lds" % (V_X[jj], SRD_X, SRD_X + 3, so, ROW_IMM[jj], pol),
                      kind="v", tag=("pair", n) if jj == 4 else ("pairp", n, jj), cost=12))
    return ops


def tap_load_ops(ta, cfg):
    dx, dy = divmod(ta, 3)
    pol = cfg.get("wpol", "")
    ops = []
    ops.append(Op("s_mov_b32 s%d, %d" % (S_WS, (dy * 3 + dx) * TAPB)))
    ops.append(Op("s_add_u32 m0, s%d, %d" % (S_W4608, TAP_BASE[ta])))
    for jj, (pt, off) in enumerate(((0, 0), (1, 1024), (2, 2048), (0, 3072), (0, 3584))):
        ops.append(Op("buffer_load_dwordx4 v%d, s[%d:%d], s%d offen offset:%d%s lds" % (V_W[pt], SRD_W, SRD_W + 3, S_WS, off, pol),
                      kind="v", tag=("tap", ta) if jj == 4 else None, cost=12))
    return ops


def seq_with_m0_nop(ops):
    out = []
    for op in ops:
        out.append(op)
        if op.text.startswith("s_add_u32 m0"):
            out.append(Op("s_nop 0"))
    return out


def piece_ops(tok, cfg):
    name, j = tok.split(".")
    j = int(j); n = int(name[1])
    if name[0] == "t":
        ops = tap_load_ops(n, cfg)
        pre = [op for op in ops if op.kind != "v"]
    else:
        ops = row_load_ops(n, cfg)
        pre = [op for op in ops if op.kind != "v" and not op.text.startswith("s_add_u32 m0")] if j == 0 else []
        pre.append(Op("s_add_u32 m0, s%d, %d" % (S_XM, PAIR_BASE[n] + ROW_M0[j])))
    vm = [op for op in ops if op.kind == "v"]
    return seq_with_m0_nop(pre + [vm[j]])


def tr_ops(ta):
    dx, dy = divmod(ta, 3)
    rel = TAP_BASE[ta] - TR_REG[ta]
    assert 0 <= rel <= 65535 - 13200
    ops = []
    if ta > 0 and TR_REG[ta - 1] != TR_REG[ta]:
        d = (TR_REG[ta] - TR_REG[ta - 1]) & 0xFFFFFFFF
        for par in range(2):
            ops.append(Op("v_add_u32 v%d, 0x%x, v%d" % (V_TR[par], d, V_TR[par])))
    for t in range(3):
        for kc in range(3):
            c, r = wreg(dy, dx, kc, t)
            for e2 in range(2):
                imm = rel + kc * 6144 + e2 * 768 + (64 if t == 2 else 0)
                ops.append(Op("ds_read_b64_tr_b16 %s[%d:%d], v%d offset:%d" % (c, r + 2 * e2, r + 2 * e2 + 1, V_TR[t & 1], imm),
                              kind="l", tag=("w", dy, dx, kc, t, e2), sync=True, cost=8))
    return ops


def read_base(r):
    if r <= 5:
        return PAIR_BASE[r], PAIR_BASE[r] + LROW
    if r == 6:
        return PAIR_BASE[0] + LROW, PAIR_BASE[6] + LROW
    return PAIR_BASE[1] + LROW, PAIR_BASE[6]


def stg_off(q):
    return STG_BASE[(q >> 1) & 1] + (q & 1) * 3072


def stage_write_ops(o, ct, t):
    q = o * 3 + ct
    a = acc(o, ct, t)
    return [Op("v_cvt_pk_bf16_f32 v%d, v%d, v%d" % (a, a, a + 1)),
            Op("v_cvt_pk_bf16_f32 v%d, v%d, v%d" % (a + 1, a + 2, a + 3)),
            Op("ds_write_b64 v%d, v[%d:%d] offset:%d" % (V_SW[t & 1], a, a + 1, stg_off(q) + (64 if t == 2 else 0)),
               kind="l", tag=("sw", q, t), sync=True, cost=12, after=12)]


def tile_goff(q):
    o, ct = divmod(q, 3)
    return o * ROWB + ct * 3072


def pair_read_ops(u):
    return [Op("ds_read_b128 v[%d:%d], v%d offset:%d" % (V_RB + 4 * i, V_RB + 4 * i + 3, V_SR[i], STG_BASE[u & 1]),
               kind="l", tag=("sr", u, i), sync=True, cost=8) for i in range(3)]


def pair_store_ops(u, cfg):
    q = 2 * u
    pol = cfg.get("opol", " sc0 sc1")
    same_row = (q % 3) != 2
    ops = [Op("s_add_u32 s%d, s%d, %d" % (S_ST, S_OA if same_row else S_OB, tile_goff(q)))]
    for i in range(3):
        ops.append(Op("buffer_store_dwordx4 v[%d:%d], v%d, s[%d:%d], s%d offen offset:%d%s" % (V_RB + 4 * i, V_RB + 4 * i + 3, V_ST, SRD_O, SRD_O + 3, S_ST, 1024 * i, pol),
                      kind="v", need_l=[("sr", u, i)], cost=12, after=cfg.get("st_after", 12)))
    return ops


def half_read_ops(q, rb):
    return [Op("ds_read_b128 v[%d:%d], v%d offset:%d" % (rb + 4 * i, rb + 4 * i + 3, V_SH[i], stg_off(q)),
               kind="l", tag=("hr", q, i), sync=True, cost=8) for i in range(2)]


def half_store_ops(q, rb, cfg):
    pol = cfg.get("opol", " sc0 sc1")
    ops = [Op("s_add_u32 s%d, s%d, %d" % (S_ST, S_OH, tile_goff(q)))]
    ops.append(Op("buffer_store_dwordx4 v[%d:%d], v%d, s[%d:%d], s%d offen%s" % (rb, rb + 3, V_ST, SRD_O, SRD_O + 3, S_ST, pol),
                  kind="v", need_l=[("hr", q, 0)], cost=12, after=12))
    ops.append(Op("s_mov_b32 exec_hi, 0\nbuffer_store_dwordx4 v[%d:%d], v%d, s[%d:%d], s%d offen offset:1024%s\ns_mov_b32 exec_hi, -1" % (rb + 4, rb + 7, V_ST, SRD_O, SRD_O + 3, S_ST, pol),
                  kind="v", need_l=[("hr", q, 1)], cost=12, after=12))
    return ops


def stamp(i):
    return [Op("s_memtime s[%d:%d]" % (S_STAMP + 2 * i, S_STAMP + 2 * i + 1))]


def generate(cfg):
    E = Emitter()
    E.filt = cfg.get("filt", [])
    E.age = cfg.get("age", 12)
    R = E.raw
    dbg = cfg.get("stamps", False)
    names = ["start"]
    ROW_ORDER = cfg.get("rows", [2, 0, 1, 3, 4, 5, 6, 7])

    probe = cfg.get("probe")

    def st(name):
        if not dbg:
            return []
        if probe and not name.startswith("@") and name not in ("Bt0", "mfma_end"):
            return []
        names.append(name)
        assert len(names) <= 18
        return stamp(len(names) - 1)

    E.lines.append("L_start:")
    if dbg:
        R("s_memtime s[%d:%d]" % (S_STAMP, S_STAMP + 1))
        R("s_memrealtime s[%d:%d]" % (S_STAMP + 36, S_STAMP + 37))
        R("s_load_dwordx2 s[56:57], s[0:1], %d" % (32 if cfg.get("gspin") else 40))
    R("s_load_dwordx8 s[4:11], s[0:1], 0")
    R("s_cmp_ge_u32 s2, 256")
    R("s_cbranch_scc1 L_end")
    R("v_lshrrev_b32 v%d, 6, v0" % V_T0)
    R("v_and_b32 v0, 63, v0")
    R("v_readfirstlane_b32 s%d, v%d" % (S_WAVE, V_T0))
    R("s_mov_b32 s%d, %d" % (SRD_W + 2, 9 * TAPB))
    R("s_mov_b32 s%d, 0x20000" % (SRD_W + 3))
    R("s_and_b32 s%d, s%d, 1" % (S_H, S_WAVE))
    R("s_lshr_b32 s%d, s%d, 1" % (S_P, S_WAVE))
    R("s_mul_i32 s%d, s%d, 4608" % (S_W4608, S_WAVE))
    R("v_lshlrev_b32 v%d, 4, v0" % V_ST)
    R("s_lshl_b32 s%d, s%d, 5" % (S_T1, S_H))
    R("v_add_u32 v%d, s%d, v%d" % (V_T0, S_W4608, V_ST))
    R("v_xor_b32 v%d, s%d, v%d" % (V_W[0], S_T1, V_T0))
    R("v_and_b32 v%d, 32, v0" % V_T1)
    R("v_xor_b32 v%d, 32, v%d" % (V_W[2], V_W[0]))
    R("v_xor_b32 v%d, v%d, v%d" % (V_W[1], V_T1, V_W[0]))

    C = {}
    def chunk(name):
        C[name] = []
        return C[name].append
    A = chunk("x")
    A("s_and_b32 s%d, s2, 7" % S_TC)
    A("s_lshr_b32 s%d, s2, 3" % S_TR)
    A("s_mul_i32 s%d, s%d, %d" % (S_XB, S_TR, 12 * ROWB))
    A("s_mul_i32 s%d, s%d, %d" % (S_T0, S_TC, 48 * 192))
    A("s_add_u32 s%d, s%d, s%d" % (S_OBASE, S_XB, S_T0))
    A("s_sub_u32 s%d, s%d, %d" % (S_XB, S_OBASE, ROWB))
    A("s_mul_i32 s%d, s%d, %d" % (S_T0, S_P, 6 * ROWB))
    A("s_add_u32 s%d, s%d, s%d" % (S_XP, S_XB, S_T0))
    A("s_add_u32 s%d, s%d, s%d" % (S_OBASE, S_OBASE, S_T0))
    A("s_mul_i32 s%d, s%d, %d" % (S_RB, S_P, LROW))
    A("s_lshl_b32 s%d, s%d, 10" % (S_T0, S_H))
    A("s_add_u32 s%d, s%d, s%d" % (S_XM, S_RB, S_T0))
    A("s_mov_b32 s%d, %d" % (SRD_X + 2, XBYTES + 192))
    A("s_mov_b32 s%d, 0x20000" % (SRD_X + 3))
    A("s_lshl_b32 s%d, s%d, 6" % (S_T0, S_H))
    A("s_movk_i32 s%d, 1366" % S_T2)
    A("v_add_u32 v%d, s%d, v0" % (V_T0, S_T0))
    def xoff(A, jj):
        A("v_add_u32 v%d, %d, v%d" % (V_T1, ROW_START[jj], V_T0))
        A("v_mul_u32_u24 v%d, s%d, v%d" % (V_T2, S_T2, V_T1))
        A("v_lshrrev_b32 v%d, 15, v%d" % (V_T2, V_T2))
        A("v_and_b32 v%d, 2, v%d" % (V_T2, V_T2))
        A("v_xor_b32 v%d, v%d, v%d" % (V_T2, V_T2, V_T0))
        if ROW_M0[jj]:
            A("v_lshlrev_b32 v%d, 4, v%d" % (V_T2, V_T2))
            A("v_add_u32 v%d, %d, v%d" % (V_X[jj], ROW_M0[jj], V_T2))
        else:
            A("v_lshlrev_b32 v%d, 4, v%d" % (V_X[jj], V_T2))
    xoff(A, 0)
    A("s_or_b32 s%d, s%d, s%d" % (S_T0, S_TC, S_H))
    A("s_cmp_eq_u32 s%d, 0" % S_T0)
    A("s_cselect_b32 s%d, 12, 0" % S_T0)
    A("v_cmp_gt_u32 vcc, s%d, v0" % S_T0)
    A("v_mov_b32 v%d, %d" % (V_T6, HUGE))
    xoff(A, 1)
    A("v_cndmask_b32 v%d, v%d, v%d, vcc" % (V_X[0], V_X[0], V_T6))
    A = chunk("x2")
    xoff(A, 2); xoff(A, 3); xoff(A, 4)
    A("s_lshl_b32 s%d, s%d, 3" % (S_T0, S_H))
    A("s_or_b32 s%d, s%d, s%d" % (S_T0, S_T0, S_TC))
    A("s_cmp_eq_u32 s%d, 15" % S_T0)
    A("s_cselect_b32 s%d, 52, 64" % S_T0)
    A("v_cmp_le_u32 vcc, s%d, v0" % S_T0)
    A("s_or_b32 s%d, s%d, s%d" % (S_T0, S_TR, S_P))
    A("s_cmp_eq_u32 s%d, 0" % S_T0)
    A("s_cselect_b32 s%d, %d, s%d" % (S_X0, HUGE, S_XP))
    A("v_cndmask_b32 v%d, v%d, v%d, vcc" % (V_X[4], V_X[4], V_T6))
    A = chunk("bw")
    A("v_lshrrev_b32 v%d, 4, v0" % V_T7)
    A("s_mul_i32 s%d, s%d, 96" % (S_T0, S_H))
    A("v_lshlrev_b32 v%d, 3, v%d" % (V_T3, V_T7))
    A("s_lshl_b32 s%d, s%d, 8" % (S_BM, S_WAVE))
    A("s_add_u32 s%d, s%d, %d" % (S_BM, S_BM, BIAS_LDS))
    A("s_add_u32 s%d, s%d, s%d" % (S_T0, S_T0, S_BM))
    A("v_add_u32 v%d, s%d, v%d" % (V_T3, S_T0, V_T3))
    A("v_lshlrev_b32 v%d, 2, v0" % V_BO)
    A("s_mov_b32 s%d, 192" % (SRD_B + 2))
    A("s_mov_b32 s%d, 0x20000" % (SRD_B + 3))
    if cfg.get("pfmode", 0) == 0:
        A("s_lshl_b32 s%d, s%d, 2" % (S_T0, S_TR))
        A("s_add_u32 s%d, s%d, s%d" % (S_T0, S_T0, S_WAVE))
        A("s_mul_i32 s%d, s%d, %d" % (S_PFW, S_T0, 11 * 128))
        A("s_lshl_b32 s%d, s%d, 8" % (S_T0, S_T0))
        A("v_lshlrev_b32 v%d, 7, v0" % V_T4)
        A("v_add_u32 v%d, s%d, v%d" % (V_T5, S_T0, V_T4))
        A("s_lshl_b32 s%d, s%d, 12" % (S_T0, S_WAVE))
        A("s_add_u32 s%d, s%d, 4096-256-(L_pc-L_start)" % (S_T0, S_T0))
        A("v_cmp_gt_u32 vcc, 2, v0")
        A("v_add_u32 v%d, s%d, v%d" % (V_T8, S_T0, V_T4))
        A("s_nop 0")
        A("v_cndmask_b32 v%d, v%d, v%d, vcc" % (V_T5, V_T8, V_T5))
    else:
        tab = 0
        for i in range(8):
            ta = 1 + (i + 1) % 8
            dx, dy = divmod(ta, 3)
            tab |= (dy * 3 + dx) << (4 * i)
        A("s_and_b32 s%d, s%d, 7" % (S_T0, S_TR))
        A("s_lshl_b32 s%d, s%d, 2" % (S_T0, S_T0))
        A("s_lshr_b32 s%d, 0x%x, s%d" % (S_PFW, tab, S_T0))
        A("s_and_b32 s%d, s%d, 15" % (S_PFW, S_PFW))
        A("s_mul_i32 s%d, s%d, %d" % (S_PFW, S_PFW, TAPB))
        A("s_add_u32 s%d, s%d, s%d" % (S_PFW, S_PFW, S_W4608))
        A("v_lshlrev_b32 v%d, 7, v0" % V_T4)
        A("s_add_u32 s%d, s%d, s%d" % (S_T0, S_T0, S_WAVE))
        A("s_mul_i32 s%d, s%d, 640" % (S_T0, S_T0))
        A("v_add_u32 v%d, s%d, v%d" % (V_T5, S_T0, V_T4))
    A("v_min_u32 v%d, L_end-L_pc, v%d" % (V_T5, V_T5))
    A("s_getpc_b64 s[%d:%d]" % (S_PC, S_PC + 1))
    A("L_pc:")
    A = chunk("tr")
    A("s_movk_i32 s%d, 192" % S_T1)
    A("v_bfe_u32 v%d, v0, 2, 2" % V_T8)
    A("v_lshl_add_u32 v%d, v%d, 3, v%d" % (V_T8, V_T7, V_T8))
    A("v_mul_u32_u24 v%d, s%d, v%d" % (V_T8, S_T1, V_T8))
    A("v_and_b32 v%d, 1, v0" % V_T9)
    A("v_lshl_add_u32 v%d, v%d, 3, v%d" % (V_T8, V_T9, V_T8))
    A("v_bfe_u32 v%d, v0, 1, 1" % V_T9)
    A("s_mul_i32 s%d, s%d, 6" % (S_T0, S_H))
    A("v_add_u32 v%d, s%d, v%d" % (V_T9, S_T0, V_T9))
    A("v_bfe_u32 v%d, v0, 4, 1" % V_T10)
    A("v_lshlrev_b32 v%d, 1, v%d" % (V_T10, V_T10))
    for par in range(2):
        A("v_add_u32 v%d, %d, v%d" % (V_T11, 2 * par, V_T9))
        A("v_xor_b32 v%d, v%d, v%d" % (V_T11, V_T11, V_T10))
        A("v_lshl_add_u32 v%d, v%d, 4, v%d" % (V_T11, V_T11, V_T8))
        A("v_add_u32 v%d, %d, v%d" % (V_TR[par], TR_REG[0], V_T11))
    A = chunk("fb")
    A("s_movk_i32 s%d, 192" % S_T1)
    A("v_and_b32 v%d, 15, v0" % V_T8)
    for dx in range(3):
        A("v_add_u32 v%d, %d, v%d" % (V_T9, dx, V_T8))
        A("v_lshrrev_b32 v%d, 1, v%d" % (V_T10, V_T9))
        A("v_and_b32 v%d, 2, v%d" % (V_T10, V_T10))
        A("v_xor_b32 v%d, v%d, v%d" % (V_T10, V_T10, V_T7))
        A("v_lshlrev_b32 v%d, 4, v%d" % (V_T10, V_T10))
        A("v_mad_u32_u24 v%d, v%d, s%d, v%d" % (V_T10, V_T9, S_T1, V_T10))
        A("v_add_u32 v%d, s%d, v%d" % (V_B[dx], S_RB, V_T10))
    A = chunk("st")
    A("s_mov_b32 s%d, s%d" % (SRD_O, S_O))
    A("s_mov_b32 s%d, s%d" % (SRD_O + 1, S_O + 1))
    A("s_mov_b32 s%d, %d" % (SRD_O + 2, XBYTES))
    A("s_mov_b32 s%d, 0x20000" % (SRD_O + 3))
    A("s_movk_i32 s%d, 192" % S_T1)
    A("v_and_b32 v%d, 15, v0" % V_T8)
    A("s_mul_i32 s%d, s%d, 6144" % (S_T2, S_P))
    A("v_mul_u32_u24 v%d, s%d, v%d" % (V_T9, S_T1, V_T8))
    A("v_add_u32 v%d, s%d, v%d" % (V_T9, S_T2, V_T9))
    A("v_bfe_u32 v%d, v0, 4, 1" % V_T10)
    A("v_lshl_add_u32 v%d, v%d, 3, v%d" % (V_T9, V_T10, V_T9))
    A("v_bfe_u32 v%d, v0, 1, 2" % V_T10)
    A("s_mul_i32 s%d, s%d, 6" % (S_T0, S_H))
    A("v_lshrrev_b32 v%d, 5, v0" % V_T8)
    A("v_add_u32 v%d, s%d, v%d" % (V_T8, S_T0, V_T8))
    for par in range(2):
        A("v_add_u32 v%d, %d, v%d" % (V_T11, 2 * par, V_T8))
        A("v_xor_b32 v%d, v%d, v%d" % (V_T11, V_T11, V_T10))
        A("v_lshl_add_u32 v%d, v%d, 4, v%d" % (V_SW[par], V_T11, V_T9))
    A("s_mul_i32 s%d, s%d, 3072" % (S_T0, S_WAVE))
    A("s_movk_i32 s%d, 2731" % S_T2)
    for i in range(3):
        A("v_add_u32 v%d, %d, v0" % (V_T8, 64 * i))
        A("v_mul_u32_u24 v%d, s%d, v%d" % (V_T11, S_T2, V_T8))
        A("v_bfe_u32 v%d, v%d, 16, 2" % (V_T11, V_T11))
        A("v_xor_b32 v%d, v%d, v%d" % (V_T11, V_T11, V_T8))
        A("v_lshlrev_b32 v%d, 4, v%d" % (V_T11, V_T11))
        A("v_add_u32 v%d, s%d, v%d" % (V_SR[i], S_T0, V_T11))

    emitted = set()
    def issue(toks):
        for tok in toks:
            if tok.startswith("#"):
                if tok == "#st": assert "K" in emitted
                emitted.add(tok[1:])
                for ln in C[tok[1:]]:
                    if ln.endswith(":"): E.lines.append(ln)
                    else: R(ln)
            elif tok == "K":
                R("s_waitcnt lgkmcnt(0)")
                for op in st("karg"): E.emit(op)
                R("s_mov_b32 s%d, s%d" % (SRD_B, S_B))
                R("s_mov_b32 s%d, s%d" % (SRD_B + 1, S_B + 1))
                R("s_mov_b32 s%d, s%d" % (SRD_W, S_W))
                R("s_mov_b32 s%d, s%d" % (SRD_W + 1, S_W + 1))
                R("s_sub_u32 s%d, s%d, 192" % (SRD_X, S_X))
                R("s_subb_u32 s%d, s%d, 0" % (SRD_X + 1, S_X + 1))
                emitted.add("K")
                if cfg.get("gspin"):
                    R("s_mov_b32 s52, s56"); R("s_mov_b32 s53, s57"); R("s_mov_b32 s54, 256"); R("s_mov_b32 s55, 0x20000")
                    R("s_not_b32 s36, s96"); R("v_mov_b32 v240, s36"); R("v_mov_b32 v241, 0")
                    R("s_cmp_eq_u32 s%d, 0" % S_WAVE)
                    R("s_cselect_b64 exec, 1, 0")
                    E.emit(Op("buffer_atomic_umax v240, v241, s[52:55], 0 offen", kind="v"))
                    R("s_mov_b64 exec, -1")
            elif tok == "b":
                assert "bw" in emitted and "K" in emitted
                R("s_mov_b32 m0, s%d" % S_BM)
                R("s_nop 0")
                E.emit(Op("buffer_load_dword v%d, s[%d:%d], 0 offen lds" % (V_BO, SRD_B, SRD_B + 3), kind="v", tag=("bias",)))
            elif tok == "w":
                assert "bw" in emitted and "K" in emitted
                if cfg.get("pfmode", 0) == 0:
                    R("s_mov_b64 exec, 0x7ff")
                else:
                    R("s_mov_b32 exec_hi, 15")
                E.emit(Op("buffer_load_dword v%d, v%d, s[%d:%d], s%d offen" % (V_PF, V_T4, SRD_W, SRD_W + 3, S_PFW), kind="v"))
                R("s_mov_b64 exec, -1")
            elif tok == "c":
                assert "bw" in emitted
                R("s_mov_b64 exec, %d" % (15 if cfg.get("pfmode", 0) == 0 else 31))
                E.emit(Op("global_load_dword v%d, v%d, s[%d:%d]" % (V_PF + 1, V_T5, S_PC, S_PC + 1), kind="v", tag=("pf",)))
                R("s_mov_b64 exec, -1")
            elif tok.startswith("S"):
                for op in st(tok[1:]): E.emit(op)
            else:
                assert "K" in emitted
                if tok[0] == "p":
                    assert "x" in emitted and ("x2" in emitted or tok in ("p2.0", "p2.1"))
                if "." in tok:
                    ops = piece_ops(tok, cfg)
                else:
                    ops = seq_with_m0_nop(tap_load_ops(int(tok[1]), cfg) if tok[0] == "t" else row_load_ops(int(tok[1]), cfg))
                for op in ops:
                    E.emit(op)

    issue(cfg.get("pro", ["#x", "#bw", "c", "K", "b", "t0", "p2.0", "#x2", "p2.1", "p2.2", "p2.3", "p2.4", "w", "#tr", "#fb", "#st", "Siss1", "t1", "Siss2"]))
    assert emitted >= {"x", "x2", "bw", "tr", "fb", "st", "K"}

    frags = []; fidx = {}
    mf = []
    step_start = []

    def fr(k, r, ct, dx, kc):
        key = (k, r, ct, dx, kc)
        if key not in fidx:
            fidx[key] = len(frags); frags.append(key)
        return fidx[key]

    if cfg.get("endmode", 1) == 0:
        STEPS = [None, [(0, [0])], [(1, [1, 0])], [(3, [2, 1, 0])], [(4, [2, 1, 0])], [(5, [2, 1, 0])], [(6, [2, 1])], [(7, [2])]]
    else:
        STEPS = [None, [(0, [0])], [(1, [1, 0])], [(3, [2, 1, 0])], [(4, [2, 1, 0])], [(5, [2, 1])], [(6, [2])], [(5, [0]), (6, [1]), (7, [2])]]
    for k, parts in enumerate(STEPS):
        step_start.append(len(mf))
        if k == 0:
            r = 2
            units = [(0, dy, ct) for (dy, ct) in cfg.get("units0", [(0, 0), (0, 1), (0, 2), (1, 0), (1, 1), (1, 2), (2, 0), (2, 1), (2, 2)])]
            units += [(dx, dy, ct) for dx in (1, 2) for dy in range(3) for ct in range(3)]
            for (dx, dy, ct) in units:
                for t in range(3):
                    for kc in range(3):
                        mf.append((fr(k, r, ct, dx, kc), dy, t))
        else:
            for ct in range(3):
                for (r, dys) in parts:
                    for dy in dys:
                        for t in range(3):
                            for dx in range(3):
                                for kc in range(3):
                                    mf.append((fr(k, r, ct, dx, kc), dy, t))
    NM = len(mf)
    assert NM == 1458
    step_start.append(NM)
    first_use = {}; last_use = {}
    last_of = {}; first_of = {}; first_flags = []
    for i, (fi, dy, t) in enumerate(mf):
        first_use.setdefault(fi, i); last_use[fi] = i
        k, r, ct, dx, kc = frags[fi]
        key = (r - dy, ct, t)
        last_of[key] = i
        first_flags.append(key not in first_of)
        first_of.setdefault(key, i)

    CAP = 12
    side = [[] for _ in range(NM + 2)]
    used = [0] * (NM + 3)

    def force(pos, ops):
        for op in ops:
            side[pos].append(op); used[pos] += op.cost

    def sched(ops, start, step=0, cap=CAP, vstep=None, dry=False):
        p = start; first = None
        tmp = {}
        for op in ops:
            while p <= NM and used[p] + tmp.get(p, 0) + op.cost > cap:
                p += 1
            assert p <= NM, op.text
            if dry:
                tmp[p] = tmp.get(p, 0) + op.cost
                tmp[p + 1] = tmp.get(p + 1, 0) + op.after
            else:
                side[p].append(op); used[p] += op.cost
                used[p + 1] += op.after
            if first is None: first = p
            last = p
            p += vstep if (vstep is not None and op.kind == "v") else step
        return first, last

    dlt = cfg.get("tdelta", 2)
    bt = {i: 27 * (i - 1) + dlt for i in range(1, 9)}
    bt[1] = 26; bt[2] = 32
    for kk, vv in cfg.get("bt", {}).items():
        bt[int(kk)] = vv
    bars = []

    def barrier(pos, vt, name=None, nosync=False):
        op = Op("s_barrier", kind="b", need_v=vt, cost=4)
        op.nosync = nosync
        side[pos].insert(0, op); used[pos] += 4
        if not nosync:
            bars.append(pos)
        if name and dbg and not probe:
            side[pos].insert(1, st(name)[0])
        return op

    for i in range(1, 9):
        barrier(bt[i], [("tap", i)], "Bt%d" % i if i in (1, 2, 3, 8) else None, nosync=(i <= 2))
    ba1, ba2 = cfg.get("ba", [8, 17])
    barrier(ba1, [("pairp", 2, 2)], "A1", nosync=True)
    barrier(ba2, [("pair", 2)], "A2", nosync=True)

    WLAG = 9
    beta = {}
    for u in range(8):
        q = 2 * u + 1
        o, ct = divmod(q, 3)
        beta[u] = last_of[(o, ct, 2)] + WLAG + (cfg.get("beta_lag", 12) if u < 7 else 8)
    q16 = last_of[(5, 1, 2)] + WLAG + 8
    pair_of_row = {0: 0, 1: 1, 3: 3, 4: 4, 5: 5, 6: 6}
    LEAD = cfg.get("lead", 40)
    row_bar = {}
    beta_ops = {}
    for u in range(8):
        beta_ops[u] = barrier(beta[u], [], "b%d" % u if u in (0, 4) else None)
    barrier(q16, [], None)
    for k in range(1, 8):
        r = ROW_ORDER[k]
        want = step_start[k] - (cfg.get("lead1", 16) if k <= 2 else LEAD)
        if r not in pair_of_row:
            row_bar[k] = want
            continue
        cands = [u for u in range(8) if want - cfg.get("bwin", 130) <= beta[u] <= want + 15]
        if cands:
            u = cands[-1]
            beta_ops[u].need_v.append(("pair", pair_of_row[r]))
            row_bar[k] = max(beta[u], want)
        else:
            if k == 1:
                want = max(want, bt[8] + 22)
            barrier(want, [("pair", pair_of_row[r])], "B%d" % k if k == 1 else None)
            row_bar[k] = want
    bars.sort()
    tap_free = row_bar[1]

    pool = [(V_FR + 4 * i, 0) for i in range(12)]
    extra = []
    w_pos = {}
    tail_w = []
    for q in range(18):
        o, ct = divmod(q, 3)
        for t in range(3):
            p0 = last_of[(o, ct, t)] + WLAG
            if q // 2 >= 2:
                p0 = max(p0, beta[q // 2 - 1] + 1)
            if p0 + 3 > NM:
                tail_w.append((o, ct, t)); continue
            f, l = sched(stage_write_ops(o, ct, t), p0)
            w_pos[(q, t)] = (f, l)
            nxt = [first_of[(o2, ct, t)] for o2 in range(o + 1, 6) if ACC_SET[o2] == ACC_SET[o]]
            if nxt:
                assert l < min(nxt), (q, t, l, nxt)
    for u in range(8):
        assert w_pos[(2 * u + 1, 2)][1] < beta[u], (u, w_pos[(2 * u + 1, 2)], beta[u])
        if u >= 2:
            assert w_pos[(2 * u, 0)][1] > beta[u - 1], (u,)
    assert w_pos[(16, 2)][1] < q16 and w_pos[(16, 0)][1] > beta[7]
    assert w_pos[(0, 0)][1] > tap_free
    if cfg.get("extra_bufs", True):
        for ct in (1, 2):
            for t in range(3):
                pool.append((acc(0, ct, t), w_pos[(ct, t)][1] + 2))

    dma = cfg.get("dma", [(5, "t2.2"), (12, "t2.3"), (14, "t2.4"), (18, "t3"), (34, "t4"), (50, "t5"), (66, "t6"), (84, "t7"), (100, "t8"), (116, "p0"),
                          (165, "p1"), (250, "p3"), (330, "p4"), (500, "p5"), (740, "p6")])
    prev_end = -1
    dma_start = {}
    for (p, tok) in dma:
        n = int(tok[1])
        p = max(p, prev_end + 1)
        if "." in tok:
            ops = [op for op in piece_ops(tok, cfg) if not op.text.startswith("s_nop")]
            f, prev_end = sched(ops, p)
        elif tok[0] == "t":
            dma_start[tok] = p
            f, prev_end = sched(tap_load_ops(n, cfg), p, vstep=cfg.get('vstep', 3))
            assert prev_end < bt[n], (tok, prev_end, bt[n])
        else:
            if n >= 3:
                assert p > tap_free
            dma_start[tok] = p
            f, prev_end = sched(row_load_ops(n, cfg), p, vstep=cfg.get('vstep', 3))
        if dbg or cfg.get("verbose"):
            print("dma", tok, f, prev_end, file=sys.stderr)

    fbuf = {}
    PFD = cfg.get("pfd", 60)
    prev = 0
    cur_bank = (0, LROW)
    pre_reads = []
    for fi, (k, r, ct, dx, kc) in enumerate(frags):
        pool.sort(key=lambda x: x[1])
        reg, free = pool.pop(0)
        fbuf[fi] = reg
        pool.append((reg, last_use[fi] + 1))
        a, b = read_base(r)
        ops = []
        rel = a - cur_bank[0]
        if not (b - a == cur_bank[1] - cur_bank[0] and 0 <= rel <= 65535 - 6400):
            d0 = (a - cur_bank[0]) & 0xFFFFFFFF
            d1 = ((b - cur_bank[1]) - (a - cur_bank[0])) & 0xFFFFFFFF
            if d1 == 0:
                for d in range(3):
                    ops.append(Op("v_add_u32 v%d, 0x%x, v%d" % (V_B[d], d0, V_B[d])))
            else:
                ops.append(Op("s_mul_i32 s%d, s%d, 0x%x" % (S_RB, S_P, d1)))
                ops.append(Op("s_add_u32 s%d, s%d, 0x%x" % (S_RB, S_RB, d0)))
                for d in range(3):
                    ops.append(Op("v_add_u32 v%d, s%d, v%d" % (V_B[d], S_RB, V_B[d])))
            cur_bank = (a, b); rel = 0
        rd = Op("ds_read_b128 v[%d:%d], v%d offset:%d" % (reg, reg + 3, V_B[dx], rel + ct * 3072 + kc * 64), kind="l", tag=("f", fi), cost=8)
        if fi < 3:
            pre_reads.append(rd); continue
        p0 = max(free, first_use[fi] - PFD, prev, row_bar.get(k, 0))
        if k == 0:
            p0 = max(p0, ba1 if fi < 6 else ba2)
        if ops:
            f, l = sched(ops, max(prev, p0 - 6))
            p0 = max(p0, l)
        f, l = sched([rd], p0, cap=(28 if fi < 9 else CAP))
        assert l <= first_use[fi], (fi, l, first_use[fi])
        prev = l
        if first_use[fi] - l < cfg.get("warn_dist", 10):
            print("short prefetch distance", fi, frags[fi], first_use[fi] - l, file=sys.stderr)

    tr_end = {0: -1}
    tap_first = {}
    for i, (fi, dy, t) in enumerate(mf):
        if frags[fi][0] == 0:
            tap_first.setdefault(ta_of(dy, frags[fi][3]), i)
    for i in range(1, 9):
        ops = tr_ops(i)
        dead = tap_first[i] - cfg.get("trdead", 2)
        if bt[i] >= dead - 2:
            force(bt[i], ops); tr_end[i] = bt[i]
            continue
        n_over = 0
        while True:
            save_used = list(used); save_side = [list(x) for x in side]
            f, l = (bt[i], bt[i])
            if n_over:
                f, l = sched(ops[:n_over], bt[i], cap=16)
            if n_over < len(ops):
                f2, l = sched(ops[n_over:], l)
            if l <= dead or n_over >= len(ops):
                break
            used[:] = save_used
            for a in range(len(side)): side[a][:] = save_side[a]
            n_over += 2
        tr_end[i] = l
        assert l < tap_first[i] + 3
        if i < 8: assert l < bt[i + 1] or i + 1 <= 2 or True
        if dbg or cfg.get("verbose"):
            print("tr", i, bt[i], l, "over", n_over, file=sys.stderr)
    for i in range(1, 8):
        assert tr_end[i] <= bt[i + 1] or TR_REG[i] == TR_REG[i + 1], i
    def freed(prev_tap, p):
        return any(tr_end[prev_tap] < b < p for b in bars)
    for n, pv in TAP_PREV.items():
        assert freed(pv, dma_start["t%d" % n]), n
    assert freed(6, dma_start["p1"])
    assert tr_end[8] < tap_free

    late = [Op("s_mul_i32 s%d, s%d, 3072" % (S_OA, S_H)), Op("s_add_u32 s%d, s%d, s%d" % (S_OA, S_OA, S_OBASE)),
            Op("s_mul_i32 s%d, s%d, %d" % (S_OB, S_H, ROWB - 6144)), Op("s_add_u32 s%d, s%d, s%d" % (S_OB, S_OB, S_OBASE)),
            Op("s_mul_i32 s%d, s%d, 1536" % (S_OH, S_H)), Op("s_add_u32 s%d, s%d, s%d" % (S_OH, S_OH, S_OBASE))]
    late += [Op("s_mul_i32 s%d, s%d, 96" % (S_T0, S_H)), Op("s_movk_i32 s%d, 2731" % S_T2), Op("s_mul_i32 s%d, s%d, 6144" % (S_T1, S_P))]
    for i in range(2):
        if i:
            late.append(Op("s_add_u32 s%d, s%d, 64" % (S_T0, S_T0)))
        late += [Op("v_add_u32 v%d, s%d, v0" % (V_TR[0], S_T0)),
                 Op("v_mul_u32_u24 v%d, s%d, v%d" % (V_TR[1], S_T2, V_TR[0])),
                 Op("v_bfe_u32 v%d, v%d, 16, 2" % (V_TR[1], V_TR[1])),
                 Op("v_xor_b32 v%d, v%d, v%d" % (V_TR[1], V_TR[1], V_TR[0])),
                 Op("v_lshlrev_b32 v%d, 4, v%d" % (V_TR[1], V_TR[1])),
                 Op("v_add_u32 v%d, s%d, v%d" % (V_SH[i], S_T1, V_TR[1]))]
    f, l = sched(late, 260, step=1)
    assert l < beta[0]

    for u in range(8):
        f, l = sched(pair_read_ops(u), beta[u] + 1)
        f2, l2 = sched(pair_store_ops(u, cfg), l + cfg.get("rgap", 8), step=cfg.get("ststep", 4))
        nb = beta[u + 1] if u < 7 else q16
        assert l2 < nb, (u, l2, nb)
    f, l = sched(half_read_ops(16, V_RB), q16 + 1)
    tail16 = True
    if l + 6 + 4 <= NM:
        sched(half_store_ops(16, V_RB, cfg), l + 6)
        tail16 = False

    if probe:
        for i in range(15):
            pos = probe[0] + i * probe[1]
            side[pos].append(Op("L_probe%d:" % pos))
            side[pos] += st("@%d" % pos)
    def touch():
        if cfg.get("pads"):
            R("s_mov_b64 vcc, -1")
            for i in range(len(cfg["pads"])):
                R("s_cmp_eq_u32 s%d, %d" % (S_WAVE, i % 4))
                R("s_cbranch_scc1 L_pad%d" % i)
            E.lines.append("L_padret:")
            R("s_mov_b64 vcc, 0")
    if cfg.get("padpos", "pre") == "pre":
        touch()
    E.emit(Op("s_barrier", kind="b", need_v=[("tap", 0)]))
    for op in st("Ba"): E.emit(op)
    for op in tr_ops(0):
        E.emit(op)
    issue(cfg.get("second", ["t2.0", "t2.1"]))
    for t in range(3):
        b = V_BIAS + 4 * t + 2
        E.emit(Op("ds_read_b64 v[%d:%d], v%d offset:%d" % (b, b + 1, V_T3, 32 * t), kind="l", tag=("br", t), need_v=[("bias",)]))
    for t in range(3):
        b = V_BIAS + 4 * t
        E.emit(Op("v_lshlrev_b32 v%d, 16, v%d" % (b, b + 2), need_l=[("br", t)]))
        E.emit(Op("v_and_b32 v%d, 0xffff0000, v%d" % (b + 1, b + 2)))
        E.emit(Op("v_lshlrev_b32 v%d, 16, v%d" % (b + 2, b + 3)))
        E.emit(Op("v_and_b32 v%d, 0xffff0000, v%d" % (b + 3, b + 3)))
    issue(cfg.get("third", []))
    if cfg.get("padpos", "pre") == "post":
        touch()
    op = Op("s_barrier", kind="b", need_v=[("pairp", 2, 1)]); op.nosync = True
    E.emit(op)
    for op in st("Bt0"): E.emit(op)
    if dbg: R("s_memrealtime s[50:51]")
    E.pos = 0
    for op in pre_reads:
        E.emit(op)

    pads = cfg.get("pads", [])
    for i, (fi, dy, t) in enumerate(mf):
        E.pos = i
        if cfg.get("labels"):
            E.lines.append("L_m%d:" % i)
        if i in pads:
            E.lines.append("L_pad%d:" % pads.index(i))
            R("s_cbranch_vccnz L_padret")
        for op in side[i]:
            E.emit(op)
        k, r, ct, dx, kc = frags[fi]
        o = r - dy
        d = acc(o, ct, t)
        c, rg = wreg(dy, dx, kc, t)
        fb = fbuf[fi]
        srcc = (V_BIAS + 4 * t) if first_flags[i] else d
        E.emit(Op("v_mfma_f32_16x16x32_bf16 v[%d:%d], %s[%d:%d], v[%d:%d], v[%d:%d]" % (d, d + 3, c, rg, rg + 3, fb, fb + 3, srcc, srcc + 3),
                  kind="m", need_l=[("f", fi), ("w", dy, dx, kc, t, 1)]))
    for op in side[NM]:
        E.emit(op)
    for op in st("mfma_end"): E.emit(op)
    if dbg: R("s_memrealtime s[58:59]")
    if tail16:
        for op in half_store_ops(16, V_RB, cfg):
            E.emit(op)
        R("s_nop 3")
    else:
        R("s_nop 7")
    for (o, ct, t) in tail_w:
        for op in stage_write_ops(o, ct, t):
            E.emit(op)
    E.emit(Op("s_barrier", kind="b"))
    rb2 = acc(0, 1, 0)
    for op in half_read_ops(17, rb2) + half_store_ops(17, rb2, cfg):
        E.emit(op)
    if dbg:
        for op in st("st_iss"): E.emit(op)
        R("s_waitcnt vmcnt(0)")
        for op in st("st_done"): E.emit(op)
        R("s_memrealtime s[%d:%d]" % (S_STAMP + 38, S_STAMP + 39))
        R("s_waitcnt lgkmcnt(0)")
        if cfg.get("gspin"):
            mode, K = cfg["gspin"]
            R("v_mov_b32 v241, 0")
            R("buffer_load_dword v240, v241, s[52:55], 0 offen sc0 sc1")
            R("s_waitcnt vmcnt(0)")
            R("v_readfirstlane_b32 s37, v240")
            R("s_nop 3")
            R("s_not_b32 s37, s37")
            a, b = {"span": (37, 98), "skew": (37, 96), "dur": (96, 98), "zero": (96, 96), "pro": (37, 50), "mend": (37, 58)}[mode]
            R("s_sub_u32 s36, s%d, s%d" % (b, a))
            R("s_mul_i32 s36, s36, %d" % K)
            R("s_add_u32 s36, s36, s98")
            E.lines.append("L_spin:")
            R("s_memrealtime s[38:39]")
            R("s_waitcnt lgkmcnt(0)")
            R("s_sub_u32 s37, s36, s38")
            R("s_cmp_gt_i32 s37, 0")
            R("s_cbranch_scc1 L_spin")
            R("s_endpgm")
        R("s_mov_b32 s52, s56"); R("s_mov_b32 s53, s57"); R("s_mov_b32 s54, 0x100000"); R("s_mov_b32 s55, 0x20000")
        R("s_lshl_b32 s%d, s2, 2" % S_T0)
        R("s_add_u32 s%d, s%d, s%d" % (S_T0, S_T0, S_WAVE))
        R("s_mul_i32 s%d, s%d, 256" % (S_T0, S_T0))
        for j in range(40):
            R("v_mov_b32 v%d, s%d" % (64 + j, S_STAMP + j))
        R("v_mov_b32 v104, s50"); R("v_mov_b32 v105, s51"); R("v_mov_b32 v106, s58"); R("v_mov_b32 v107, s59")
        R("v_mov_b32 v1, 0")
        R("s_mov_b64 exec, 1")
        for j in range(11):
            R("buffer_store_dwordx4 v[%d:%d], v1, s[52:55], s%d offen offset:%d" % (64 + 4 * j, 67 + 4 * j, S_T0, 16 * j))
    E.lines.append("L_end:")
    R("s_endpgm")
    info = dict(names=names, bars=bars, bs=dict(beta=beta, row_bar=row_bar, q16=q16), step_start=step_start, tail_w=tail_w, tail16=tail16)
    return HEADER + "\n".join(E.lines) + "\n" + FOOTER, info


def with_pads(cfg):
    import subprocess, tempfile, os, re
    npads = 4
    c = dict(cfg, labels=True, pads=[100000 + i for i in range(npads)])
    c["pads"] = [0, 1, 2, 3]
    for it in range(3):
        txt, info = generate(c)
        with tempfile.TemporaryDirectory() as d:
            open(d + "/a.s", "w").write(txt)
            subprocess.run(["clang", "-x", "assembler", "-target", "amdgcn-amd-amdhsa", "-mcpu=gfx950", "-c", d + "/a.s", "-o", d + "/a.o"], check=True)
            out = subprocess.run(["llvm-objdump", "-t", d + "/a.o"], capture_output=True, text=True).stdout
        addr = {}
        for ln in out.splitlines():
            m = re.match(r"([0-9a-f]+) .* L_m(\d+)$", ln)
            if m: addr[int(m.group(2))] = int(m.group(1), 16)
        new = []
        for k in range(1, npads + 1):
            cand = [i for i in sorted(addr) if addr[i] >= 4096 * k]
            new.append(cand[0])
        if new == c["pads"]:
            break
        c["pads"] = new
    print("pads", [(i, hex(addr[i])) for i in c["pads"]], file=sys.stderr)
    return dict(cfg, pads=c["pads"])


if __name__ == "__main__":
    import json
    out = sys.argv[1]
    cfg = json.loads(sys.argv[2]) if len(sys.argv) > 2 else {}
    if cfg.get("autopad", True):
        cfg = with_pads(cfg)
    txt, info = generate(cfg)
    open(out, "w").write(txt)
    open(out + ".info", "w").write(json.dumps(info))
    print(info)
```
